```python
import torch

def _softmax(x, axis=-1):
    return torch.softmax(x, dim=axis)
def _gelu(x):
    return torch.nn.functional.gelu(x, approximate="tanh")
def _silu(x):
    return torch.nn.functional.silu(x)
def _sigmoid(x):
    return torch.sigmoid(x)
def _layernorm(x, axis=-1, eps=1e-5):
    m = x.mean(dim=axis, keepdim=True)
    v = x.var(dim=axis, keepdim=True, unbiased=False)
    return (x - m) / torch.sqrt(v + eps)
def _scatter_add(tgt, idx, src, axis=0):
    return tgt.clone().index_add_(axis, idx, src)
def _segment_sum(src, seg, n):
    out = torch.zeros((n,) + src.shape[1:], dtype=src.dtype)
    return out.index_add_(0, seg, src)
def _pad(x, pw):
    flat = tuple(v for pair in reversed(pw) for v in pair)
    return torch.nn.functional.pad(x, flat)

kernel_name = 'standalone__linear_kernel_rfa__prompt'

def setup_inputs():

    _w = (lambda a: (lambda t: t.to(torch.bfloat16) if t.is_floating_point() else t)(torch.as_tensor(a)))
    B, H, Sq, Sk, D, M = 1, 32, 2048, 2048, 192, 64
    return {
        "q": _w((lambda *s: torch.randn(*s, dtype=torch.bfloat16) * 0.1)(B, H, Sq, D)),
        "k": _w((lambda *s: torch.randn(*s, dtype=torch.bfloat16) * 1.6)(B, H, Sk, D)),
        "v": _w((lambda *s: torch.randn(*s, dtype=torch.bfloat16) * 1.6)(B, H, Sk, D)),
        "omega": _w((lambda *s: torch.randn(*s, dtype=torch.bfloat16) * 1.6)(M, D)),
    }

def reference(q, k, v, omega):
    d = q.shape[-1]
    m = omega.shape[0]
    scale = float(d) ** -0.25
    qs = q * scale
    ks = k * scale
    q_proj = torch.einsum("bhsd,md->bhsm", qs, omega)
    k_proj = torch.einsum("bhsd,md->bhsm", ks, omega)
    q_sq = 0.5 * torch.einsum("bhsd,bhsd->bhs", qs, qs)[..., None]
    k_sq = 0.5 * torch.einsum("bhsd,bhsd->bhs", ks, ks)[..., None]
    inv_sqrt_m = float(m) ** -0.5
    phi_q = torch.exp(q_proj - q_sq) * inv_sqrt_m + 1e-6
    phi_k = torch.exp(k_proj - k_sq) * inv_sqrt_m + 1e-6
    kv = torch.einsum("bhsm,bhsd->bhmd", phi_k, v)
    z  = torch.einsum("bhsm->bhm", phi_k)
    num = torch.einsum("bhqm,bhmd->bhqd", phi_q, kv)
    den = torch.einsum("bhqm,bhm->bhq", phi_q, z)[..., None] + 1e-6
    return num / den
```

```python
import numpy as np, sys

def f32bits(x):
    return int(np.float32(x).view(np.uint32))

H, S, D, M = 32, 2048, 192, 64
ROWB = D * 2
TENS_BYTES = H * S * ROWB
OM_BYTES = M * ROWB
SCALE = f32bits(float(D) ** -0.25)
LOG2E = 1.4426950408889634
L_HI = np.float32(LOG2E)
L_LO = np.float32(LOG2E - float(L_HI))
LN2 = np.float32(0.6931471805599453)
EPS_B = 0x35860000
MASKHI = 0xffff0000

NCHUNK = 8
PART_TILES = 52
PART_BYTES = PART_TILES * 1024
PART_TOTAL = 256 * PART_BYTES
FRAG_BASE = 16 * 1024 * 1024
FRAG_HEAD = 26 * 1024
FRAG_END = FRAG_BASE + H * FRAG_HEAD

OMEGA_LDS = 0
K1_PHI_LDS = 24576
PHI_ROW = 2112
K1_V_LDS = K1_PHI_LDS + 16 * PHI_ROW
K1_LDS = K1_V_LDS + 256 * ROWB
K3_FRAG_LDS = 24576
K3_LDS = K3_FRAG_LDS + FRAG_HEAD

class Asm:
    def __init__(self):
        self.lines = []
    def __call__(self, s):
        self.lines.append("    " + s)
    def raw(self, s):
        self.lines.append(s)
    def label(self, s):
        self.lines.append(s + ":")
    def comment(self, s):
        self.lines.append("    ; " + s)
    def text(self):
        return "\n".join(self.lines) + "\n"

def vr(base, n):
    return f"v[{base}:{base+n-1}]"

def chk_buf_off(off):
    assert 0 <= off <= 4095, off
    return off

def chk_ds_off(off):
    assert 0 <= off <= 65535, off
    return off

def srd(a, dst, ptr, nbytes):
    a(f"s_mov_b32 s{dst}, s{ptr}")
    a(f"s_mov_b32 s{dst+1}, s{ptr+1}")
    a(f"s_mov_b32 s{dst+2}, {nbytes}")
    a(f"s_mov_b32 s{dst+3}, 0x00020000")

S_X = 4
S_Y = 6
S_OM = 8
S_WS = 10
SRD_X, SRD_Y, SRD_OM, SRD_WS = 12, 16, 20, 24
S_W, S_H, S_C, S_ROW = 28, 29, 30, 31
S_T0, S_T1, S_T2 = 32, 33, 41
S_SCALE, S_LHI, S_LLO, S_LN2 = 34, 35, 36, 37
S_MT2, S_DG, S_POFF = 38, 39, 40
S_FOFF = 42

V_TID, V_LANE, V_FRAG, V_L16 = 0, 1, 2, 11
V_B = 16
V_SQ = 40
V_SQB = 44
V_C0125, V_EPS = 45, 46
V_C = 48
V_RING = 64

def prologue_common(a, n_wg, xoff, yoff):
    a(f"s_cmp_ge_u32 s2, {n_wg}")
    a(f"s_cbranch_scc1 {a.end_label}")
    a(f"s_load_dwordx2 s[{S_X}:{S_X+1}], s[0:1], {xoff}")
    a(f"s_load_dwordx2 s[{S_Y}:{S_Y+1}], s[0:1], {yoff}")
    a(f"s_load_dwordx2 s[{S_OM}:{S_OM+1}], s[0:1], 24")
    a(f"s_load_dwordx2 s[{S_WS}:{S_WS+1}], s[0:1], 48")
    a(f"v_and_b32 v{V_LANE}, 63, v{V_TID}")
    a(f"v_lshrrev_b32 v12, 6, v{V_TID}")
    a(f"v_and_b32 v13, 15, v{V_LANE}")
    a(f"v_readfirstlane_b32 s{S_W}, v12")
    a(f"v_lshrrev_b32 v14, 4, v{V_LANE}")
    a(f"v_mul_u32_u24 v{V_FRAG}, {ROWB}, v13")
    a(f"v_lshl_add_u32 v{V_FRAG}, v14, 4, v{V_FRAG}")
    a(f"v_lshlrev_b32 v{V_L16}, 4, v{V_LANE}")
    a(f"s_lshr_b32 s{S_H}, s2, 3")
    a(f"s_and_b32 s{S_C}, s2, 7")
    a(f"s_mov_b32 s{S_SCALE}, 0x{SCALE:08x}")
    a(f"s_mov_b32 s{S_LHI}, 0x{f32bits(L_HI):08x}")
    a(f"s_mov_b32 s{S_LLO}, 0x{f32bits(L_LO):08x}")
    a(f"s_mov_b32 s{S_LN2}, 0x{f32bits(LN2):08x}")
    a(f"v_mov_b32 v{V_C0125}, 0x3e000000")
    a(f"v_mov_b32 v{V_EPS}, 0x{EPS_B:08x}")
    a(f"s_lshl_b32 s{S_T0}, s{S_H}, 11")
    a(f"s_lshl_b32 s{S_T1}, s{S_C}, 8")
    a(f"s_add_u32 s{S_T0}, s{S_T0}, s{S_T1}")
    a(f"s_lshl_b32 s{S_T1}, s{S_W}, 4")
    a(f"s_add_u32 s{S_T0}, s{S_T0}, s{S_T1}")
    a(f"s_mul_i32 s{S_ROW}, s{S_T0}, {ROWB}")
    a("s_waitcnt lgkmcnt(0)")
    srd(a, SRD_X, S_X, TENS_BYTES)
    srd(a, SRD_Y, S_Y, TENS_BYTES)
    srd(a, SRD_OM, S_OM, OM_BYTES)

def omega_dma(a, tag):
    for second in (0, 1):
        if second:
            a(f"s_cmp_ge_u32 s{S_W}, 8")
            a(f"s_cbranch_scc1 L_om_skip_{tag}")
            a(f"s_add_u32 s{S_T2}, s{S_W}, 16")
        else:
            a(f"s_mov_b32 s{S_T2}, s{S_W}")
        a(f"s_mul_i32 s{S_T0}, s{S_T2}, 43")
        a(f"s_lshr_b32 s{S_T0}, s{S_T0}, 8")
        a(f"s_mul_i32 s{S_T1}, s{S_T0}, 6")
        a(f"s_sub_u32 s{S_T1}, s{S_T2}, s{S_T1}")
        a(f"s_mul_i32 s{S_T0}, s{S_T0}, {16*ROWB}")
        a(f"s_lshl_b32 s{S_T1}, s{S_T1}, 6")
        a(f"s_add_u32 s{S_T0}, s{S_T0}, s{S_T1}")
        a(f"s_lshl_b32 s{S_T1}, s{S_T2}, 10")
        a(f"s_add_u32 s{S_T1}, s{S_T1}, {OMEGA_LDS}")
        a(f"s_mov_b32 m0, s{S_T1}")
        a("s_nop 0")
        a(f"buffer_load_dwordx4 v{V_FRAG}, s[{SRD_OM}:{SRD_OM+3}], s{S_T0} offen lds")
    a.label(f"L_om_skip_{tag}")

def load_x_frags(a):
    for t in range(6):
        a(f"buffer_load_dwordx4 {vr(V_B+4*t,4)}, v{V_FRAG}, s[{SRD_X}:{SRD_X+3}], s{S_ROW} offen offset:{chk_buf_off(64*t)}")

def transform(a, younger_vmem, tmp):
    for i in range(4):
        a(f"v_mov_b32 v{V_SQ+i}, 0")
    for t in range(6):
        a(f"s_waitcnt vmcnt({younger_vmem + 5 - t})")
        regs = [V_B + 4*t + i for i in range(4)]
        lo = [tmp + 2*i for i in range(4)]
        hi = [tmp + 2*i + 1 for i in range(4)]
        for i, r in enumerate(regs):
            a(f"v_lshlrev_b32 v{lo[i]}, 16, v{r}")
            a(f"v_and_b32 v{hi[i]}, 0x{MASKHI:08x}, v{r}")
        for i in range(4):
            a(f"v_mul_f32 v{lo[i]}, s{S_SCALE}, v{lo[i]}")
            a(f"v_mul_f32 v{hi[i]}, s{S_SCALE}, v{hi[i]}")
        for i, r in enumerate(regs):
            a(f"v_cvt_pk_bf16_f32 v{r}, v{lo[i]}, v{hi[i]}")
        for i, r in enumerate(regs):
            a(f"v_dot2_f32_bf16 v{V_SQ+i}, v{r}, v{r}, v{V_SQ+i}")
    a("s_nop 3")
    a(f"v_add_f32 v{V_SQ}, v{V_SQ}, v{V_SQ+1}")
    a(f"v_add_f32 v{V_SQ+2}, v{V_SQ+2}, v{V_SQ+3}")
    a(f"v_add_f32 v{V_SQ}, v{V_SQ}, v{V_SQ+2}")
    a(f"v_mov_b32 v{V_SQ+1}, v{V_SQ}")
    a("s_nop 1")
    a(f"v_permlane32_swap_b32 v{V_SQ}, v{V_SQ+1}")
    a(f"v_add_f32 v{V_SQ}, v{V_SQ}, v{V_SQ+1}")
    a(f"v_mov_b32 v{V_SQ+1}, v{V_SQ}")
    a("s_nop 1")
    a(f"v_permlane16_swap_b32 v{V_SQ}, v{V_SQ+1}")
    a(f"v_add_f32 v{V_SQ}, v{V_SQ}, v{V_SQ+1}")
    a(f"v_cvt_pk_bf16_f32 v{V_SQ+1}, v{V_SQ}, v{V_SQ}")
    a(f"v_lshlrev_b32 v{V_SQB}, 16, v{V_SQ+1}")

def gemm1(a, nring):
    nfr = 24
    def rd(f):
        a(f"ds_read_b128 {vr(V_RING+4*(f % nring),4)}, v{V_L16} offset:{chk_ds_off(OMEGA_LDS + 1024*f)}")
    for f in range(min(nring, nfr)):
        rd(f)
    for f in range(nfr):
        mt, t = divmod(f, 6)
        outstanding = min(nring, nfr - f) - 1
        a(f"s_waitcnt lgkmcnt({outstanding})")
        srcc = "0" if t == 0 else vr(V_C+4*mt, 4)
        a(f"v_mfma_f32_16x16x32_bf16 {vr(V_C+4*mt,4)}, {vr(V_RING+4*(f % nring),4)}, {vr(V_B+4*t,4)}, {srcc}")
        if f + nring < nfr:
            rd(f + nring)

def phi_tile(a, c, T, outp):
    P0, P1 = T, T + 1
    X = [T + 2 + i for i in range(4)]
    E = [T + 6 + i for i in range(4)]
    R = [T + 10 + i for i in range(4)]
    def unpack(dst):
        a(f"v_lshlrev_b32 v{dst[0]}, 16, v{P0}")
        a(f"v_and_b32 v{dst[1]}, 0x{MASKHI:08x}, v{P0}")
        a(f"v_lshlrev_b32 v{dst[2]}, 16, v{P1}")
        a(f"v_and_b32 v{dst[3]}, 0x{MASKHI:08x}, v{P1}")
    a(f"v_cvt_pk_bf16_f32 v{P0}, v{c}, v{c+1}")
    a(f"v_cvt_pk_bf16_f32 v{P1}, v{c+2}, v{c+3}")
    unpack(X)
    for i in range(4):
        a(f"v_fma_f32 v{X[i]}, v{V_SQB}, -0.5, v{X[i]}")
    a(f"v_cvt_pk_bf16_f32 v{P0}, v{X[0]}, v{X[1]}")
    a(f"v_cvt_pk_bf16_f32 v{P1}, v{X[2]}, v{X[3]}")
    unpack(X)
    for i in range(4):
        a(f"v_mul_f32 v{E[i]}, s{S_LHI}, v{X[i]}")
    for i in range(4):
        a(f"v_fma_f32 v{R[i]}, v{X[i]}, s{S_LHI}, -v{E[i]}")
    for i in range(4):
        a(f"v_fma_f32 v{R[i]}, v{X[i]}, s{S_LLO}, v{R[i]}")
    for i in range(4):
        a(f"v_exp_f32 v{E[i]}, v{E[i]}")
    for i in range(4):
        a(f"v_mul_f32 v{R[i]}, s{S_LN2}, v{R[i]}")
    for i in range(4):
        a(f"v_fma_f32 v{E[i]}, v{E[i]}, v{R[i]}, v{E[i]}")
    a(f"v_cvt_pk_bf16_f32 v{P0}, v{E[0]}, v{E[1]}")
    a(f"v_cvt_pk_bf16_f32 v{P1}, v{E[2]}, v{E[3]}")
    unpack(X)
    for i in range(4):
        a(f"v_fma_f32 v{X[i]}, v{X[i]}, v{V_C0125}, v{V_EPS}")
    a(f"v_cvt_pk_bf16_f32 v{outp}, v{X[0]}, v{X[1]}")
    a(f"v_cvt_pk_bf16_f32 v{outp+1}, v{X[2]}, v{X[3]}")

def kernel_phase1():
    a = Asm(); a.end_label = "L_p1_end"
    name = "rfa_phase1_kernel"
    a.raw(f".globl {name}\n.p2align 8\n.type {name},@function\n{name}:")
    prologue_common(a, 256, 8, 16)
    srd(a, SRD_WS, S_WS, PART_TOTAL)
    V_VD = 3
    V_PHIW, V_PHIR, V_VR = 6, 7, 8
    for i in range(3):
        a(f"v_add_u32 v12, {64*i}, v{V_LANE}")
        a("v_mul_u32_u24 v13, 171, v12")
        a("v_lshrrev_b32 v13, 12, v13")
        a("v_mul_u32_u24 v14, 24, v13")
        a("v_sub_u32 v14, v12, v14")
        a("v_lshrrev_b32 v15, 1, v13")
        a("v_and_b32 v15, 3, v15")
        a("v_lshlrev_b32 v15, 1, v15")
        a("v_xor_b32 v14, v14, v15")
        a(f"v_mul_u32_u24 v{V_VD+i}, {ROWB}, v13")
        a(f"v_lshl_add_u32 v{V_VD+i}, v14, 4, v{V_VD+i}")
    a(f"v_and_b32 v13, 15, v{V_LANE}")
    a(f"v_lshrrev_b32 v14, 4, v{V_LANE}")
    a(f"v_mul_u32_u24 v{V_PHIW}, {PHI_ROW}, v14")
    a(f"v_lshl_add_u32 v{V_PHIW}, v13, 3, v{V_PHIW}")
    a(f"s_lshl_b32 s{S_T0}, s{S_W}, 7")
    a(f"s_add_u32 s{S_T0}, s{S_T0}, {K1_PHI_LDS}")
    a(f"v_add_u32 v{V_PHIW}, s{S_T0}, v{V_PHIW}")
    a(f"s_lshr_b32 s{S_MT2}, s{S_W}, 2")
    a(f"s_and_b32 s{S_DG}, s{S_W}, 3")
    a(f"v_and_b32 v12, 3, v{V_LANE}")
    a(f"v_lshrrev_b32 v13, 2, v{V_LANE}")
    a(f"v_mul_u32_u24 v{V_PHIR}, {PHI_ROW}, v12")
    a(f"v_lshl_add_u32 v{V_PHIR}, v13, 3, v{V_PHIR}")
    a(f"s_mul_i32 s{S_T0}, s{S_MT2}, {4*PHI_ROW}")
    a(f"s_add_u32 s{S_T0}, s{S_T0}, {K1_PHI_LDS}")
    a(f"v_add_u32 v{V_PHIR}, s{S_T0}, v{V_PHIR}")
    a("v_lshrrev_b32 v14, 1, v13")
    a("v_and_b32 v14, 3, v14")
    a("v_lshlrev_b32 v14, 1, v14")
    a("v_lshrrev_b32 v15, 1, v12")
    a(f"s_mul_i32 s{S_T0}, s{S_DG}, 6")
    a(f"v_mul_u32_u24 v13, {ROWB}, v13")
    a("v_and_b32 v12, 1, v12")
    a("v_lshl_add_u32 v13, v12, 3, v13")
    a(f"v_add_u32 v13, {K1_V_LDS}, v13")
    for i in range(3):
        a(f"s_add_u32 s{S_T1}, s{S_T0}, {2*i}")
        a(f"v_add_u32 v12, s{S_T1}, v15")
        a("v_xor_b32 v12, v12, v14")
        a(f"v_lshl_add_u32 v{V_VR+i}, v12, 4, v13")
    a(f"s_mul_i32 s{S_T0}, s2, {PART_TILES}")
    a(f"s_mul_i32 s{S_T1}, s{S_MT2}, 13")
    a(f"s_add_u32 s{S_T0}, s{S_T0}, s{S_T1}")
    a(f"s_mul_i32 s{S_T1}, s{S_DG}, 3")
    a(f"s_add_u32 s{S_T0}, s{S_T0}, s{S_T1}")
    a(f"s_lshl_b32 s{S_POFF}, s{S_T0}, 10")

    omega_dma(a, "p1")
    load_x_frags(a)
    a(f"s_mul_i32 s{S_T2}, s{S_W}, {16*ROWB}")
    a(f"s_add_u32 s{S_T2}, s{S_T2}, {K1_V_LDS}")
    for i in range(3):
        a(f"s_add_u32 s{S_T0}, s{S_T2}, {1024*i}")
        a(f"s_mov_b32 m0, s{S_T0}")
        a("s_nop 0")
        for grp in range(2):
            a(f"buffer_load_dwordx4 v{V_VD+i}, s[{SRD_Y}:{SRD_Y+3}], s{S_ROW} offen offset:{chk_buf_off(3072*grp)} lds")
    TMP = 96
    transform(a, 6, TMP)
    a("s_barrier")
    gemm1(a, 4)
    for mt in range(4):
        outp = 96 + 2*mt
        phi_tile(a, V_C + 4*mt, 80, outp)
        a(f"ds_write_b64 v{V_PHIW}, {vr(outp,2)} offset:{chk_ds_off(mt*4*PHI_ROW)}")
    a("s_waitcnt vmcnt(0) lgkmcnt(0)")
    a("s_barrier")
    V_A2 = 64
    V_ONE = 72
    V_B2 = 16
    V_ACC = 48
    for i in range(4):
        a(f"v_mov_b32 v{V_ONE+i}, 0x3f803f80")
    def reads(ks):
        b = ks & 1
        a(f"ds_read_b64_tr_b16 {vr(V_A2+4*b,2)}, v{V_PHIR} offset:{chk_ds_off(ks*256)}")
        a(f"ds_read_b64_tr_b16 {vr(V_A2+4*b+2,2)}, v{V_PHIR} offset:{chk_ds_off(ks*256+128)}")
        for i in range(3):
            base = V_B2 + 12*b + 4*i
            off = (ks % 4) * 32 * ROWB
            a(f"ds_read_b64_tr_b16 {vr(base,2)}, v{V_VR+i} offset:{chk_ds_off(off)}")
            a(f"ds_read_b64_tr_b16 {vr(base+2,2)}, v{V_VR+i} offset:{chk_ds_off(off+16*ROWB)}")
    reads(0)
    for ks in range(8):
        if ks + 1 < 8:
            if ks + 1 == 4:
                for i in range(3):
                    a(f"v_add_u32 v{V_VR+i}, {4*32*ROWB}, v{V_VR+i}")
            reads(ks + 1)
        a(f"s_waitcnt lgkmcnt({8 if ks + 1 < 8 else 0})")
        b = ks & 1
        for i in range(4):
            srcc = "0" if ks == 0 else vr(V_ACC+4*i, 4)
            bop = vr(V_B2+12*b+4*i, 4) if i < 3 else vr(V_ONE, 4)
            a(f"v_mfma_f32_16x16x32_bf16 {vr(V_ACC+4*i,4)}, {vr(V_A2+4*b,4)}, {bop}, {srcc}")
    a("s_nop 7")
    a("s_nop 1")
    for i in range(3):
        a(f"buffer_store_dwordx4 {vr(V_ACC+4*i,4)}, v{V_L16}, s[{SRD_WS}:{SRD_WS+3}], s{S_POFF} offen offset:{chk_buf_off(1024*i)}")
    a(f"s_cmp_lg_u32 s{S_DG}, 0")
    a("s_cbranch_scc1 L_p1_noz")
    a(f"s_mul_i32 s{S_T0}, s2, {PART_TILES}")
    a(f"s_mul_i32 s{S_T1}, s{S_MT2}, 13")
    a(f"s_add_u32 s{S_T0}, s{S_T0}, s{S_T1}")
    a(f"s_add_u32 s{S_T0}, s{S_T0}, 12")
    a(f"s_lshl_b32 s{S_T0}, s{S_T0}, 10")
    a(f"buffer_store_dwordx4 {vr(V_ACC+12,4)}, v{V_L16}, s[{SRD_WS}:{SRD_WS+3}], s{S_T0} offen")
    a.label("L_p1_noz")
    a.label("L_p1_end")
    a("s_endpgm")
    return name, a, 104

def kernel_reduce():
    a = Asm(); a.end_label = "L_red_end"
    name = "rfa_reduce_kernel"
    a.raw(f".globl {name}\n.p2align 8\n.type {name},@function\n{name}:")
    NWG = 416
    a(f"s_cmp_ge_u32 s2, {NWG}")
    a(f"s_cbranch_scc1 L_red_end")
    a(f"s_load_dwordx2 s[{S_WS}:{S_WS+1}], s[0:1], 48")
    a(f"v_and_b32 v{V_LANE}, 63, v0")
    a("v_lshrrev_b32 v12, 6, v0")
    a(f"v_lshlrev_b32 v{V_L16}, 4, v{V_LANE}")
    a("v_readfirstlane_b32 s28, v12")
    a(f"v_and_b32 v13, 15, v{V_LANE}")
    a(f"v_lshrrev_b32 v14, 4, v{V_LANE}")
    a("v_lshrrev_b32 v15, 2, v13")
    a("v_and_b32 v15, 1, v15")
    a("v_lshlrev_b32 v2, 11, v15")
    a("v_lshrrev_b32 v15, 3, v13")
    a("v_lshl_add_u32 v2, v15, 6, v2")
    a("v_and_b32 v15, 3, v13")
    a("v_lshl_add_u32 v2, v15, 4, v2")
    a("v_lshl_add_u32 v2, v14, 8, v2")
    a("v_lshlrev_b32 v3, 8, v14")
    a("v_lshl_add_u32 v3, v13, 4, v3")
    a("s_lshl_b32 s29, s2, 2")
    a("s_add_u32 s29, s29, s28")
    a("s_mul_i32 s30, s29, 1261")
    a("s_lshr_b32 s30, s30, 16")
    a("s_mul_i32 s31, s30, 52")
    a("s_sub_u32 s31, s29, s31")
    a("s_mul_i32 s32, s31, 5")
    a("s_lshr_b32 s32, s32, 6")
    a("s_mul_i32 s33, s32, 13")
    a("s_sub_u32 s33, s31, s33")
    a("s_mul_i32 s34, s30, 416")
    a("s_add_u32 s34, s34, s31")
    a("s_lshl_b32 s34, s34, 10")
    a("s_waitcnt lgkmcnt(0)")
    srd(a, SRD_WS, S_WS, FRAG_END)
    for c in range(NCHUNK):
        a(f"buffer_load_dwordx4 {vr(16+4*c,4)}, v{V_L16}, s[{SRD_WS}:{SRD_WS+3}], s34 offen")
        if c + 1 < NCHUNK:
            a(f"s_add_u32 s34, s34, {PART_BYTES}")
    a("s_lshr_b32 s35, s32, 1")
    a("s_and_b32 s36, s32, 1")
    a("s_lshl_b32 s35, s35, 10")
    a("s_lshl_b32 s36, s36, 3")
    a("s_add_u32 s35, s35, s36")
    a(f"s_mul_i32 s36, s30, {FRAG_HEAD}")
    a(f"s_add_u32 s36, s36, {FRAG_BASE}")
    a("s_add_u32 s35, s35, s36")
    a("s_cmp_eq_u32 s33, 12")
    a("s_cbranch_scc1 L_red_z")
    a("s_lshr_b32 s36, s33, 1")
    a("s_lshl_b32 s36, s36, 12")
    a("s_and_b32 s37, s33, 1")
    a("s_lshl_b32 s37, s37, 7")
    a("s_add_u32 s35, s35, s36")
    a("s_add_u32 s35, s35, s37")
    a("s_branch L_red_go")
    a.label("L_red_z")
    a(f"s_add_u32 s35, s35, {12*2048}")
    a("v_mov_b32 v2, v3")
    a.label("L_red_go")
    for c in range(1, NCHUNK):
        a(f"s_waitcnt vmcnt({NCHUNK - 1 - c})")
        for j in range(4):
            a(f"v_add_f32 v{16+j}, v{16+j}, v{16+4*c+j}")
    a("v_cvt_pk_bf16_f32 v4, v16, v17")
    a("v_cvt_pk_bf16_f32 v5, v18, v19")
    a(f"buffer_store_dwordx2 v[4:5], v2, s[{SRD_WS}:{SRD_WS+3}], s35 offen")
    a.label("L_red_end")
    a("s_endpgm")
    return name, a, 48

def kernel_phase2():
    a = Asm(); a.end_label = "L_p2_end"
    name = "standalone__linear_kernel_rfa__prompt_kernel"
    a.raw(f".globl {name}\n.p2align 8\n.type {name},@function\n{name}:")
    prologue_common(a, 256, 0, 32)
    srd(a, SRD_WS, S_WS, FRAG_END)
    omega_dma(a, "p2")
    a(f"s_mul_i32 s{S_FOFF}, s{S_H}, {FRAG_HEAD}")
    a(f"s_add_u32 s{S_FOFF}, s{S_FOFF}, {FRAG_BASE}")
    for second in (0, 1):
        if second:
            a(f"s_cmp_ge_u32 s{S_W}, 10")
            a("s_cbranch_scc1 L_fr_skip")
            a(f"s_add_u32 s{S_T2}, s{S_W}, 16")
        else:
            a(f"s_mov_b32 s{S_T2}, s{S_W}")
        a(f"s_lshl_b32 s{S_T0}, s{S_T2}, 10")
        a(f"s_add_u32 s{S_T1}, s{S_T0}, {K3_FRAG_LDS}")
        a(f"s_add_u32 s{S_T0}, s{S_T0}, s{S_FOFF}")
        a(f"s_mov_b32 m0, s{S_T1}")
        a("s_nop 0")
        a(f"buffer_load_dwordx4 v{V_L16}, s[{SRD_WS}:{SRD_WS+3}], s{S_T0} offen lds")
    a.label("L_fr_skip")
    load_x_frags(a)
    transform(a, 0, 96)
    a("s_barrier")
    gemm1(a, 6)
    V_PB = 88
    for mt in range(4):
        phi_tile(a, V_C + 4*mt, 96, V_PB + 2*mt)
    ACC = [16 + 4*i for i in range(6)] + [48 + 4*i for i in range(4)] + [112 + 4*i for i in range(3)]
    NR = 6
    nfr = 26
    def rd(f):
        a(f"ds_read_b128 {vr(V_RING+4*(f % NR),4)}, v{V_L16} offset:{chk_ds_off(K3_FRAG_LDS + 1024*f)}")
    order = [24, 25] + list(range(24))
    for i in range(NR):
        rd_f = order[i]
        a(f"ds_read_b128 {vr(V_RING+4*i,4)}, v{V_L16} offset:{chk_ds_off(K3_FRAG_LDS + 1024*rd_f)}")
    for i, f in enumerate(order):
        T, kap = divmod(f, 2)
        outstanding = min(NR, nfr - i) - 1
        a(f"s_waitcnt lgkmcnt({outstanding})")
        srcc = "0" if kap == 0 else vr(ACC[T], 4)
        a(f"v_mfma_f32_16x16x32_bf16 {vr(ACC[T],4)}, {vr(V_RING+4*(i % NR),4)}, {vr(V_PB+4*kap,4)}, {srcc}")
        if i + NR < nfr:
            a(f"ds_read_b128 {vr(V_RING+4*(i % NR),4)}, v{V_L16} offset:{chk_ds_off(K3_FRAG_LDS + 1024*order[i+NR])}")
    a("s_nop 7")
    a("s_nop 1")
    DEN, RCP = 96, 97
    a(f"v_cvt_pk_bf16_f32 v{DEN}, v{ACC[12]}, v{ACC[12]}")
    a(f"v_lshlrev_b32 v{DEN}, 16, v{DEN}")
    a(f"v_add_f32 v{DEN}, v{V_EPS}, v{DEN}")
    a(f"v_cvt_pk_bf16_f32 v{DEN}, v{DEN}, v{DEN}")
    a(f"v_lshlrev_b32 v{DEN}, 16, v{DEN}")
    a(f"v_rcp_f32 v{RCP}, v{DEN}")
    for u in range(6):
        O = 100 + 4*(u & 1)
        N = 64
        src = [ACC[2*u] + j for j in range(4)] + [ACC[2*u+1] + j for j in range(4)]
        for p in range(4):
            a(f"v_cvt_pk_bf16_f32 v{N+16+p}, v{src[2*p]}, v{src[2*p+1]}")
        for p in range(4):
            a(f"v_lshlrev_b32 v{N+2*p}, 16, v{N+16+p}")
            a(f"v_and_b32 v{N+2*p+1}, 0x{MASKHI:08x}, v{N+16+p}")
        for e in range(8):
            a(f"v_mul_f32 v{N+8+e}, v{N+e}, v{RCP}")
        for e in range(8):
            a(f"v_fma_f32 v{N+e}, -v{N+8+e}, v{DEN}, v{N+e}")
        for e in range(8):
            a(f"v_fma_f32 v{N+8+e}, v{N+e}, v{RCP}, v{N+8+e}")
        for p in range(4):
            a(f"v_cvt_pk_bf16_f32 v{O+p}, v{N+8+2*p}, v{N+8+2*p+1}")
        a(f"buffer_store_dwordx4 {vr(O,4)}, v{V_FRAG}, s[{SRD_Y}:{SRD_Y+3}], s{S_ROW} offen offset:{chk_buf_off(64*u)}")
    a.label("L_p2_end")
    a("s_endpgm")
    return name, a, 124

def descriptor(name, vgpr):
    acc = (vgpr + 3) // 4 * 4
    return f""".amdhsa_kernel {name}
  .amdhsa_next_free_vgpr {vgpr}
  .amdhsa_next_free_sgpr 64
  .amdhsa_accum_offset {acc}
  .amdhsa_group_segment_fixed_size 0
  .amdhsa_kernarg_size 56
  .amdhsa_user_sgpr_count 2
  .amdhsa_user_sgpr_kernarg_segment_ptr 1
  .amdhsa_system_sgpr_workgroup_id_x 1
.end_amdhsa_kernel
"""

HEADER = """; Kernarg layout for this problem (56 bytes, ptrs only, base s[0:1]):
"""

def main():
    ks = [kernel_phase1(), kernel_reduce(), kernel_phase2()]
    out = HEADER
    out += f"; @launch kernel=rfa_phase1_kernel grid=(256,1,1) block=(1024,1,1) lds={K1_LDS}\n"
    out += f"; @launch kernel=rfa_reduce_kernel grid=(416,1,1) block=(256,1,1) lds=0\n"
    out += f"; @launch kernel=standalone__linear_kernel_rfa__prompt_kernel grid=(256,1,1) block=(1024,1,1) lds={K3_LDS}\n"
    out += '.amdgcn_target "amdgcn-amd-amdhsa--gfx950"\n.text\n'
    for name, a, vg in ks:
        out += a.text()
    out += '.section .rodata,"a"\n.p2align 6\n'
    for name, a, vg in ks:
        out += descriptor(name, vg)
    path = sys.argv[1] if len(sys.argv) > 1 else "standalone__linear_kernel_rfa__prompt.s"
    open(path, "w").write(out)
    print("wrote", path, len(out), "bytes")

if __name__ == "__main__":
    main()
```

```python
import numpy as np, sys

def f32bits(x):
    return int(np.float32(x).view(np.uint32))

H, S, D, M = 32, 2048, 192, 64
ROWB = D * 2
TENS_BYTES = H * S * ROWB
OM_BYTES = M * ROWB
SCALE = f32bits(float(D) ** -0.25)
LOG2E = 1.4426950408889634
L_HI = np.float32(LOG2E)
L_LO = np.float32(LOG2E - float(L_HI))
LN2 = np.float32(0.6931471805599453)
EPS_B = 0x35860000
MASKHI = 0xffff0000

NCHUNK = 8
PART_TILES = 52
PART_BYTES = PART_TILES * 1024
PART_TOTAL = 256 * PART_BYTES
FRAG_BASE = 16 * 1024 * 1024
FRAG_HEAD = 26 * 1024
FRAG_END = FRAG_BASE + H * FRAG_HEAD

OMEGA_LDS = 0
K1_PHI_LDS = 24576
PHI_ROW = 2112
K1_V_LDS = K1_PHI_LDS + 16 * PHI_ROW
K1_LDS = K1_V_LDS + 256 * ROWB
K3_FRAG_LDS = 24576
K3_LDS = K3_FRAG_LDS + FRAG_HEAD

import os
DIAG = int(os.environ.get("DIAG", "0"))
DIAG_BASE = 128 * 1024 * 1024
NT = " nt" if int(os.environ.get("NT", "1")) else ""
NTS = " nt" if int(os.environ.get("NTS", "1")) else ""
KFIRST = int(os.environ.get("KFIRST", "2"))
class Asm:
    def __init__(self):
        self.lines = []
        self.nstamp = 0
    def __call__(self, s):
        self.lines.append("    " + s)
    def raw(self, s):
        self.lines.append(s)
    def label(self, s):
        self.lines.append(s + ":")
    def comment(self, s):
        self.lines.append("    ; " + s)
    def text(self):
        return "\n".join(self.lines) + "\n"
    def stamp(self, what=""):
        if not DIAG:
            return
        i = self.nstamp; self.nstamp += 1
        assert i < 10
        self(f"s_memrealtime s[{44+2*i}:{45+2*i}]")
        self("s_waitcnt lgkmcnt(0)")
    def dump_stamps(self, kid):
        if not DIAG:
            return
        self("s_waitcnt vmcnt(0) lgkmcnt(0)")
        self.stamp("end")
        self("s_mov_b32 s24, s10")
        self("s_mov_b32 s25, s11")
        self(f"s_mov_b32 s26, {DIAG_BASE + 3*16*1024*1024}")
        self("s_mov_b32 s27, 0x00020000")
        for i in range(12):
            self(f"v_mov_b32 v{4+i}, s{44+2*i}" if i < self.nstamp else f"v_mov_b32 v{4+i}, 0")
        self("v_mov_b32 v3, 0")
        self("s_lshl_b32 s3, s2, 4")
        self("s_add_u32 s3, s3, s28")
        self("s_lshl_b32 s3, s3, 6")
        self(f"s_add_u32 s3, s3, {DIAG_BASE + kid*16*1024*1024}")
        self("s_mov_b64 exec, 1")
        for i in range(3):
            self(f"buffer_store_dwordx4 v[{4+4*i}:{7+4*i}], v3, s[24:27], s3 offen offset:{16*i}")

def vr(base, n):
    return f"v[{base}:{base+n-1}]"

def chk_buf_off(off):
    assert 0 <= off <= 4095, off
    return off

def chk_ds_off(off):
    assert 0 <= off <= 65535, off
    return off

def srd(a, dst, ptr, nbytes):
    a(f"s_mov_b32 s{dst}, s{ptr}")
    a(f"s_mov_b32 s{dst+1}, s{ptr+1}")
    a(f"s_mov_b32 s{dst+2}, {nbytes}")
    a(f"s_mov_b32 s{dst+3}, 0x00020000")

S_X = 4
S_Y = 6
S_OM = 8
S_WS = 10
SRD_X, SRD_Y, SRD_OM, SRD_WS = 12, 16, 20, 24
S_W, S_H, S_C, S_ROW = 28, 29, 30, 31
S_T0, S_T1, S_T2 = 32, 33, 41
S_SCALE, S_LHI, S_LLO, S_LN2 = 34, 35, 36, 37
S_MT2, S_DG, S_POFF = 38, 39, 40
S_FOFF = 42

V_TID, V_LANE, V_FRAG, V_L16 = 0, 1, 2, 11
V_B = 16
V_SQ = 40
V_SQB = 44
V_C0125, V_EPS = 45, 46
V_C = 48
V_RING = 64

def prologue_common(a, n_wg, xoff, yoff):
    a(f"s_cmp_ge_u32 s2, {n_wg}")
    a(f"s_cbranch_scc1 {a.end_label}")
    a.stamp("entry")
    a(f"s_load_dwordx2 s[{S_X}:{S_X+1}], s[0:1], {xoff}")
    a(f"s_load_dwordx2 s[{S_Y}:{S_Y+1}], s[0:1], {yoff}")
    a(f"s_load_dwordx2 s[{S_OM}:{S_OM+1}], s[0:1], 24")
    a(f"s_load_dwordx2 s[{S_WS}:{S_WS+1}], s[0:1], 48")
    a(f"v_and_b32 v{V_LANE}, 63, v{V_TID}")
    a(f"v_lshrrev_b32 v12, 6, v{V_TID}")
    a(f"v_and_b32 v13, 15, v{V_LANE}")
    a(f"v_readfirstlane_b32 s{S_W}, v12")
    a(f"v_lshrrev_b32 v14, 4, v{V_LANE}")
    a(f"v_mul_u32_u24 v{V_FRAG}, {ROWB}, v13")
    a(f"v_lshl_add_u32 v{V_FRAG}, v14, 4, v{V_FRAG}")
    a(f"v_lshlrev_b32 v{V_L16}, 4, v{V_LANE}")
    a(f"s_lshr_b32 s{S_H}, s2, 3")
    a(f"s_and_b32 s{S_C}, s2, 7")
    a(f"s_mov_b32 s{S_SCALE}, 0x{SCALE:08x}")
    a(f"s_mov_b32 s{S_LHI}, 0x{f32bits(L_HI):08x}")
    a(f"s_mov_b32 s{S_LLO}, 0x{f32bits(L_LO):08x}")
    a(f"s_mov_b32 s{S_LN2}, 0x{f32bits(LN2):08x}")
    a(f"v_mov_b32 v{V_C0125}, 0x3e000000")
    a(f"v_mov_b32 v{V_EPS}, 0x{EPS_B:08x}")
    a(f"s_lshl_b32 s{S_T0}, s{S_H}, 11")
    a(f"s_lshl_b32 s{S_T1}, s{S_C}, 8")
    a(f"s_add_u32 s{S_T0}, s{S_T0}, s{S_T1}")
    a(f"s_lshl_b32 s{S_T1}, s{S_W}, 4")
    a(f"s_add_u32 s{S_T0}, s{S_T0}, s{S_T1}")
    a(f"s_mul_i32 s{S_ROW}, s{S_T0}, {ROWB}")
    a("s_waitcnt lgkmcnt(0)")
    a.stamp("kernarg")
    srd(a, SRD_X, S_X, TENS_BYTES)
    srd(a, SRD_Y, S_Y, TENS_BYTES)
    srd(a, SRD_OM, S_OM, OM_BYTES)

def omega_dma(a, tag):
    for second in (0, 1):
        if second:
            a(f"s_cmp_ge_u32 s{S_W}, 8")
            a(f"s_cbranch_scc1 L_om_skip_{tag}")
            a(f"s_add_u32 s{S_T2}, s{S_W}, 16")
        else:
            a(f"s_mov_b32 s{S_T2}, s{S_W}")
        a(f"s_mul_i32 s{S_T0}, s{S_T2}, 43")
        a(f"s_lshr_b32 s{S_T0}, s{S_T0}, 8")
        a(f"s_mul_i32 s{S_T1}, s{S_T0}, 6")
        a(f"s_sub_u32 s{S_T1}, s{S_T2}, s{S_T1}")
        a(f"s_mul_i32 s{S_T0}, s{S_T0}, {16*ROWB}")
        a(f"s_lshl_b32 s{S_T1}, s{S_T1}, 6")
        a(f"s_add_u32 s{S_T0}, s{S_T0}, s{S_T1}")
        a(f"s_lshl_b32 s{S_T1}, s{S_T2}, 10")
        a(f"s_add_u32 s{S_T1}, s{S_T1}, {OMEGA_LDS}")
        a(f"s_mov_b32 m0, s{S_T1}")
        a("s_nop 0")
        a(f"buffer_load_dwordx4 v{V_FRAG}, s[{SRD_OM}:{SRD_OM+3}], s{S_T0} offen lds")
    a.label(f"L_om_skip_{tag}")

def load_x_frags(a, t0=0, t1=6):
    for t in range(t0, t1):
        a(f"buffer_load_dwordx4 {vr(V_B+4*t,4)}, v{V_FRAG}, s[{SRD_X}:{SRD_X+3}], s{S_ROW} offen offset:{chk_buf_off(64*t)}{NT}")

def transform(a, younger_vmem, tmp):
    for i in range(4):
        a(f"v_mov_b32 v{V_SQ+i}, 0")
    for t in range(6):
        a(f"s_waitcnt vmcnt({younger_vmem + 5 - t})")
        regs = [V_B + 4*t + i for i in range(4)]
        lo = [tmp + 2*i for i in range(4)]
        hi = [tmp + 2*i + 1 for i in range(4)]
        for i, r in enumerate(regs):
            a(f"v_lshlrev_b32 v{lo[i]}, 16, v{r}")
            a(f"v_and_b32 v{hi[i]}, 0x{MASKHI:08x}, v{r}")
        for i in range(4):
            a(f"v_mul_f32 v{lo[i]}, s{S_SCALE}, v{lo[i]}")
            a(f"v_mul_f32 v{hi[i]}, s{S_SCALE}, v{hi[i]}")
        for i, r in enumerate(regs):
            a(f"v_cvt_pk_bf16_f32 v{r}, v{lo[i]}, v{hi[i]}")
        for i, r in enumerate(regs):
            a(f"v_dot2_f32_bf16 v{V_SQ+i}, v{r}, v{r}, v{V_SQ+i}")
    a("s_nop 3")
    a(f"v_add_f32 v{V_SQ}, v{V_SQ}, v{V_SQ+1}")
    a(f"v_add_f32 v{V_SQ+2}, v{V_SQ+2}, v{V_SQ+3}")
    a(f"v_add_f32 v{V_SQ}, v{V_SQ}, v{V_SQ+2}")
    a(f"v_mov_b32 v{V_SQ+1}, v{V_SQ}")
    a("s_nop 1")
    a(f"v_permlane32_swap_b32 v{V_SQ}, v{V_SQ+1}")
    a(f"v_add_f32 v{V_SQ}, v{V_SQ}, v{V_SQ+1}")
    a(f"v_mov_b32 v{V_SQ+1}, v{V_SQ}")
    a("s_nop 1")
    a(f"v_permlane16_swap_b32 v{V_SQ}, v{V_SQ+1}")
    a(f"v_add_f32 v{V_SQ}, v{V_SQ}, v{V_SQ+1}")
    a(f"v_cvt_pk_bf16_f32 v{V_SQ+1}, v{V_SQ}, v{V_SQ}")
    a(f"v_lshlrev_b32 v{V_SQB}, 16, v{V_SQ+1}")

def gemm1(a, nring):
    nfr = 24
    def rd(f):
        a(f"ds_read_b128 {vr(V_RING+4*(f % nring),4)}, v{V_L16} offset:{chk_ds_off(OMEGA_LDS + 1024*f)}")
    for f in range(min(nring, nfr)):
        rd(f)
    for f in range(nfr):
        mt, t = divmod(f, 6)
        outstanding = min(nring, nfr - f) - 1
        a(f"s_waitcnt lgkmcnt({outstanding})")
        srcc = "0" if t == 0 else vr(V_C+4*mt, 4)
        a(f"v_mfma_f32_16x16x32_bf16 {vr(V_C+4*mt,4)}, {vr(V_RING+4*(f % nring),4)}, {vr(V_B+4*t,4)}, {srcc}")
        if f + nring < nfr:
            rd(f + nring)

def phi_tile(a, c, T, outp):
    P0, P1 = T, T + 1
    X = [T + 2 + i for i in range(4)]
    E = [T + 6 + i for i in range(4)]
    R = [T + 10 + i for i in range(4)]
    def unpack(dst):
        a(f"v_lshlrev_b32 v{dst[0]}, 16, v{P0}")
        a(f"v_and_b32 v{dst[1]}, 0x{MASKHI:08x}, v{P0}")
        a(f"v_lshlrev_b32 v{dst[2]}, 16, v{P1}")
        a(f"v_and_b32 v{dst[3]}, 0x{MASKHI:08x}, v{P1}")
    a(f"v_cvt_pk_bf16_f32 v{P0}, v{c}, v{c+1}")
    a(f"v_cvt_pk_bf16_f32 v{P1}, v{c+2}, v{c+3}")
    unpack(X)
    for i in range(4):
        a(f"v_fma_f32 v{X[i]}, v{V_SQB}, -0.5, v{X[i]}")
    a(f"v_cvt_pk_bf16_f32 v{P0}, v{X[0]}, v{X[1]}")
    a(f"v_cvt_pk_bf16_f32 v{P1}, v{X[2]}, v{X[3]}")
    unpack(X)
    for i in range(4):
        a(f"v_mul_f32 v{E[i]}, s{S_LHI}, v{X[i]}")
    for i in range(4):
        a(f"v_fma_f32 v{R[i]}, v{X[i]}, s{S_LHI}, -v{E[i]}")
    for i in range(4):
        a(f"v_fma_f32 v{R[i]}, v{X[i]}, s{S_LLO}, v{R[i]}")
    for i in range(4):
        a(f"v_exp_f32 v{E[i]}, v{E[i]}")
    for i in range(4):
        a(f"v_mul_f32 v{R[i]}, s{S_LN2}, v{R[i]}")
    for i in range(4):
        a(f"v_fma_f32 v{E[i]}, v{E[i]}, v{R[i]}, v{E[i]}")
    a(f"v_cvt_pk_bf16_f32 v{P0}, v{E[0]}, v{E[1]}")
    a(f"v_cvt_pk_bf16_f32 v{P1}, v{E[2]}, v{E[3]}")
    unpack(X)
    for i in range(4):
        a(f"v_fma_f32 v{X[i]}, v{X[i]}, v{V_C0125}, v{V_EPS}")
    a(f"v_cvt_pk_bf16_f32 v{outp}, v{X[0]}, v{X[1]}")
    a(f"v_cvt_pk_bf16_f32 v{outp+1}, v{X[2]}, v{X[3]}")

def kernel_phase1():
    a = Asm(); a.end_label = "L_p1_end"
    name = "rfa_phase1_kernel"
    a.raw(f".globl {name}\n.p2align 8\n.type {name},@function\n{name}:")
    prologue_common(a, 256, 8, 16)
    srd(a, SRD_WS, S_WS, PART_TOTAL)
    V_VD = 3
    V_PHIW, V_PHIR, V_VR = 6, 7, 8
    for i in range(3):
        a(f"v_add_u32 v12, {64*i}, v{V_LANE}")
        a("v_mul_u32_u24 v13, 171, v12")
        a("v_lshrrev_b32 v13, 12, v13")
        a("v_mul_u32_u24 v14, 24, v13")
        a("v_sub_u32 v14, v12, v14")
        a("v_lshrrev_b32 v15, 1, v13")
        a("v_and_b32 v15, 3, v15")
        a("v_lshlrev_b32 v15, 1, v15")
        a("v_xor_b32 v14, v14, v15")
        a(f"v_mul_u32_u24 v{V_VD+i}, {ROWB}, v13")
        a(f"v_lshl_add_u32 v{V_VD+i}, v14, 4, v{V_VD+i}")
    a(f"v_and_b32 v13, 15, v{V_LANE}")
    a(f"v_lshrrev_b32 v14, 4, v{V_LANE}")
    a(f"v_mul_u32_u24 v{V_PHIW}, {PHI_ROW}, v14")
    a(f"v_lshl_add_u32 v{V_PHIW}, v13, 3, v{V_PHIW}")
    a(f"s_lshl_b32 s{S_T0}, s{S_W}, 7")
    a(f"s_add_u32 s{S_T0}, s{S_T0}, {K1_PHI_LDS}")
    a(f"v_add_u32 v{V_PHIW}, s{S_T0}, v{V_PHIW}")
    a(f"s_lshr_b32 s{S_MT2}, s{S_W}, 2")
    a(f"s_and_b32 s{S_DG}, s{S_W}, 3")
    a(f"v_and_b32 v12, 3, v{V_LANE}")
    a(f"v_lshrrev_b32 v13, 2, v{V_LANE}")
    a(f"v_mul_u32_u24 v{V_PHIR}, {PHI_ROW}, v12")
    a(f"v_lshl_add_u32 v{V_PHIR}, v13, 3, v{V_PHIR}")
    a(f"s_mul_i32 s{S_T0}, s{S_MT2}, {4*PHI_ROW}")
    a(f"s_add_u32 s{S_T0}, s{S_T0}, {K1_PHI_LDS}")
    a(f"v_add_u32 v{V_PHIR}, s{S_T0}, v{V_PHIR}")
    a("v_lshrrev_b32 v14, 1, v13")
    a("v_and_b32 v14, 3, v14")
    a("v_lshlrev_b32 v14, 1, v14")
    a("v_lshrrev_b32 v15, 1, v12")
    a(f"s_mul_i32 s{S_T0}, s{S_DG}, 6")
    a(f"v_mul_u32_u24 v13, {ROWB}, v13")
    a("v_and_b32 v12, 1, v12")
    a("v_lshl_add_u32 v13, v12, 3, v13")
    a(f"v_add_u32 v13, {K1_V_LDS}, v13")
    for i in range(3):
        a(f"s_add_u32 s{S_T1}, s{S_T0}, {2*i}")
        a(f"v_add_u32 v12, s{S_T1}, v15")
        a("v_xor_b32 v12, v12, v14")
        a(f"v_lshl_add_u32 v{V_VR+i}, v12, 4, v13")
    a(f"s_mul_i32 s{S_T0}, s2, {PART_TILES}")
    a(f"s_mul_i32 s{S_T1}, s{S_MT2}, 13")
    a(f"s_add_u32 s{S_T0}, s{S_T0}, s{S_T1}")
    a(f"s_mul_i32 s{S_T1}, s{S_DG}, 3")
    a(f"s_add_u32 s{S_T0}, s{S_T0}, s{S_T1}")
    a(f"s_lshl_b32 s{S_POFF}, s{S_T0}, 10")

    omega_dma(a, "p1")
    load_x_frags(a, 0, KFIRST)
    a(f"s_waitcnt vmcnt({KFIRST})")
    a("s_barrier")
    load_x_frags(a, KFIRST, 6)
    a.stamp("loads issued")
    a.stamp("barrier1")
    TMP = 96
    transform(a, 0, TMP)
    a(f"s_mul_i32 s{S_T2}, s{S_W}, {16*ROWB}")
    a(f"s_add_u32 s{S_T2}, s{S_T2}, {K1_V_LDS}")
    for i in range(3):
        a(f"s_add_u32 s{S_T0}, s{S_T2}, {1024*i}")
        a(f"s_mov_b32 m0, s{S_T0}")
        a("s_nop 0")
        for grp in range(2):
            a(f"buffer_load_dwordx4 v{V_VD+i}, s[{SRD_Y}:{SRD_Y+3}], s{S_ROW} offen offset:{chk_buf_off(3072*grp)}{NT} lds")
    a.stamp("transform")
    gemm1(a, 4)
    a.stamp("gemm1")
    for mt in range(4):
        outp = 96 + 2*mt
        phi_tile(a, V_C + 4*mt, 80, outp)
        a(f"ds_write_b64 v{V_PHIW}, {vr(outp,2)} offset:{chk_ds_off(mt*4*PHI_ROW)}")
    a("s_waitcnt vmcnt(0) lgkmcnt(0)")
    a.stamp("phi+V landed")
    a("s_barrier")
    a.stamp("barrier2")
    V_A2 = 64
    V_ONE = 72
    V_B2 = 16
    V_ACC = 48
    for i in range(4):
        a(f"v_mov_b32 v{V_ONE+i}, 0x3f803f80")
    def reads(ks):
        b = ks & 1
        a(f"ds_read_b64_tr_b16 {vr(V_A2+4*b,2)}, v{V_PHIR} offset:{chk_ds_off(ks*256)}")
        a(f"ds_read_b64_tr_b16 {vr(V_A2+4*b+2,2)}, v{V_PHIR} offset:{chk_ds_off(ks*256+128)}")
        for i in range(3):
            base = V_B2 + 12*b + 4*i
            off = (ks % 4) * 32 * ROWB
            a(f"ds_read_b64_tr_b16 {vr(base,2)}, v{V_VR+i} offset:{chk_ds_off(off)}")
            a(f"ds_read_b64_tr_b16 {vr(base+2,2)}, v{V_VR+i} offset:{chk_ds_off(off+16*ROWB)}")
    reads(0)
    for ks in range(8):
        if ks + 1 < 8:
            if ks + 1 == 4:
                for i in range(3):
                    a(f"v_add_u32 v{V_VR+i}, {4*32*ROWB}, v{V_VR+i}")
            reads(ks + 1)
        a(f"s_waitcnt lgkmcnt({8 if ks + 1 < 8 else 0})")
        b = ks & 1
        for i in range(4):
            srcc = "0" if ks == 0 else vr(V_ACC+4*i, 4)
            bop = vr(V_B2+12*b+4*i, 4) if i < 3 else vr(V_ONE, 4)
            a(f"v_mfma_f32_16x16x32_bf16 {vr(V_ACC+4*i,4)}, {vr(V_A2+4*b,4)}, {bop}, {srcc}")
    a("s_nop 7")
    a("s_nop 1")
    a.stamp("gemm2")
    for i in range(3):
        a(f"buffer_store_dwordx4 {vr(V_ACC+4*i,4)}, v{V_L16}, s[{SRD_WS}:{SRD_WS+3}], s{S_POFF} offen offset:{chk_buf_off(1024*i)}")
    a(f"s_cmp_lg_u32 s{S_DG}, 0")
    a("s_cbranch_scc1 L_p1_noz")
    a(f"s_mul_i32 s{S_T0}, s2, {PART_TILES}")
    a(f"s_mul_i32 s{S_T1}, s{S_MT2}, 13")
    a(f"s_add_u32 s{S_T0}, s{S_T0}, s{S_T1}")
    a(f"s_add_u32 s{S_T0}, s{S_T0}, 12")
    a(f"s_lshl_b32 s{S_T0}, s{S_T0}, 10")
    a(f"buffer_store_dwordx4 {vr(V_ACC+12,4)}, v{V_L16}, s[{SRD_WS}:{SRD_WS+3}], s{S_T0} offen")
    a.label("L_p1_noz")
    a.dump_stamps(0)
    a.label("L_p1_end")
    a("s_endpgm")
    return name, a, 104

def kernel_reduce():
    a = Asm(); a.end_label = "L_red_end"
    name = "rfa_reduce_kernel"
    a.raw(f".globl {name}\n.p2align 8\n.type {name},@function\n{name}:")
    NWG = 416
    a(f"s_cmp_ge_u32 s2, {NWG}")
    a(f"s_cbranch_scc1 L_red_end")
    a.stamp("entry")
    a(f"s_load_dwordx2 s[{S_WS}:{S_WS+1}], s[0:1], 48")
    a(f"v_and_b32 v{V_LANE}, 63, v0")
    a("v_lshrrev_b32 v12, 6, v0")
    a(f"v_lshlrev_b32 v{V_L16}, 4, v{V_LANE}")
    a("v_readfirstlane_b32 s28, v12")
    a(f"v_and_b32 v13, 15, v{V_LANE}")
    a(f"v_lshrrev_b32 v14, 4, v{V_LANE}")
    a("v_lshrrev_b32 v15, 2, v13")
    a("v_and_b32 v15, 1, v15")
    a("v_lshlrev_b32 v2, 11, v15")
    a("v_lshrrev_b32 v15, 3, v13")
    a("v_lshl_add_u32 v2, v15, 6, v2")
    a("v_and_b32 v15, 3, v13")
    a("v_lshl_add_u32 v2, v15, 4, v2")
    a("v_lshl_add_u32 v2, v14, 8, v2")
    a("v_lshlrev_b32 v3, 8, v14")
    a("v_lshl_add_u32 v3, v13, 4, v3")
    a("s_lshl_b32 s29, s2, 2")
    a("s_add_u32 s29, s29, s28")
    a("s_mul_i32 s30, s29, 1261")
    a("s_lshr_b32 s30, s30, 16")
    a("s_mul_i32 s31, s30, 52")
    a("s_sub_u32 s31, s29, s31")
    a("s_mul_i32 s32, s31, 5")
    a("s_lshr_b32 s32, s32, 6")
    a("s_mul_i32 s33, s32, 13")
    a("s_sub_u32 s33, s31, s33")
    a("s_mul_i32 s34, s30, 416")
    a("s_add_u32 s34, s34, s31")
    a("s_lshl_b32 s34, s34, 10")
    a("s_waitcnt lgkmcnt(0)")
    a.stamp("kernarg")
    srd(a, SRD_WS, S_WS, FRAG_END)
    for c in range(NCHUNK):
        a(f"buffer_load_dwordx4 {vr(16+4*c,4)}, v{V_L16}, s[{SRD_WS}:{SRD_WS+3}], s34 offen")
        if c + 1 < NCHUNK:
            a(f"s_add_u32 s34, s34, {PART_BYTES}")
    a.stamp("loads issued")
    a("s_lshr_b32 s35, s32, 1")
    a("s_and_b32 s36, s32, 1")
    a("s_lshl_b32 s35, s35, 10")
    a("s_lshl_b32 s36, s36, 3")
    a("s_add_u32 s35, s35, s36")
    a(f"s_mul_i32 s36, s30, {FRAG_HEAD}")
    a(f"s_add_u32 s36, s36, {FRAG_BASE}")
    a("s_add_u32 s35, s35, s36")
    a("s_cmp_eq_u32 s33, 12")
    a("s_cbranch_scc1 L_red_z")
    a("s_lshr_b32 s36, s33, 1")
    a("s_lshl_b32 s36, s36, 12")
    a("s_and_b32 s37, s33, 1")
    a("s_lshl_b32 s37, s37, 7")
    a("s_add_u32 s35, s35, s36")
    a("s_add_u32 s35, s35, s37")
    a("s_branch L_red_go")
    a.label("L_red_z")
    a(f"s_add_u32 s35, s35, {12*2048}")
    a("v_mov_b32 v2, v3")
    a.label("L_red_go")
    for c in range(1, NCHUNK):
        a(f"s_waitcnt vmcnt({NCHUNK - 1 - c})")
        for j in range(4):
            a(f"v_add_f32 v{16+j}, v{16+j}, v{16+4*c+j}")
    a.stamp("summed")
    a("v_cvt_pk_bf16_f32 v4, v16, v17")
    a("v_cvt_pk_bf16_f32 v5, v18, v19")
    a(f"buffer_store_dwordx2 v[4:5], v2, s[{SRD_WS}:{SRD_WS+3}], s35 offen")
    a.dump_stamps(1)
    a.label("L_red_end")
    a("s_endpgm")
    return name, a, 48

def kernel_phase2():
    a = Asm(); a.end_label = "L_p2_end"
    name = "standalone__linear_kernel_rfa__prompt_kernel"
    a.raw(f".globl {name}\n.p2align 8\n.type {name},@function\n{name}:")
    prologue_common(a, 256, 0, 32)
    srd(a, SRD_WS, S_WS, FRAG_END)
    omega_dma(a, "p2")
    a(f"s_mul_i32 s{S_FOFF}, s{S_H}, {FRAG_HEAD}")
    a(f"s_add_u32 s{S_FOFF}, s{S_FOFF}, {FRAG_BASE}")
    for second in (0, 1):
        if second:
            a(f"s_cmp_ge_u32 s{S_W}, 10")
            a("s_cbranch_scc1 L_fr_skip")
            a(f"s_add_u32 s{S_T2}, s{S_W}, 16")
        else:
            a(f"s_mov_b32 s{S_T2}, s{S_W}")
        a(f"s_lshl_b32 s{S_T0}, s{S_T2}, 10")
        a(f"s_add_u32 s{S_T1}, s{S_T0}, {K3_FRAG_LDS}")
        a(f"s_add_u32 s{S_T0}, s{S_T0}, s{S_FOFF}")
        a(f"s_mov_b32 m0, s{S_T1}")
        a("s_nop 0")
        a(f"buffer_load_dwordx4 v{V_L16}, s[{SRD_WS}:{SRD_WS+3}], s{S_T0} offen lds")
    a.label("L_fr_skip")
    load_x_frags(a, 0, KFIRST)
    a(f"s_waitcnt vmcnt({KFIRST})")
    a("s_barrier")
    load_x_frags(a, KFIRST, 6)
    a.stamp("loads issued")
    a.stamp("barrier")
    transform(a, 0, 96)
    a.stamp("transform")
    gemm1(a, 6)
    a.stamp("gemm1")
    V_PB = 88
    for mt in range(4):
        phi_tile(a, V_C + 4*mt, 96, V_PB + 2*mt)
    a.stamp("phi")
    ACC = [16 + 4*i for i in range(6)] + [48 + 4*i for i in range(4)] + [112 + 4*i for i in range(3)]
    NR = 6
    nfr = 26
    def rd(f):
        a(f"ds_read_b128 {vr(V_RING+4*(f % NR),4)}, v{V_L16} offset:{chk_ds_off(K3_FRAG_LDS + 1024*f)}")
    order = [24, 25] + list(range(24))
    for i in range(NR):
        rd_f = order[i]
        a(f"ds_read_b128 {vr(V_RING+4*i,4)}, v{V_L16} offset:{chk_ds_off(K3_FRAG_LDS + 1024*rd_f)}")
    for i, f in enumerate(order):
        T, kap = divmod(f, 2)
        outstanding = min(NR, nfr - i) - 1
        a(f"s_waitcnt lgkmcnt({outstanding})")
        srcc = "0" if kap == 0 else vr(ACC[T], 4)
        a(f"v_mfma_f32_16x16x32_bf16 {vr(ACC[T],4)}, {vr(V_RING+4*(i % NR),4)}, {vr(V_PB+4*kap,4)}, {srcc}")
        if i + NR < nfr:
            a(f"ds_read_b128 {vr(V_RING+4*(i % NR),4)}, v{V_L16} offset:{chk_ds_off(K3_FRAG_LDS + 1024*order[i+NR])}")
    a("s_nop 7")
    a("s_nop 1")
    a.stamp("gemm2")
    DEN, RCP = 96, 97
    a(f"v_cvt_pk_bf16_f32 v{DEN}, v{ACC[12]}, v{ACC[12]}")
    a(f"v_lshlrev_b32 v{DEN}, 16, v{DEN}")
    a(f"v_add_f32 v{DEN}, v{V_EPS}, v{DEN}")
    a(f"v_cvt_pk_bf16_f32 v{DEN}, v{DEN}, v{DEN}")
    a(f"v_lshlrev_b32 v{DEN}, 16, v{DEN}")
    a(f"v_rcp_f32 v{RCP}, v{DEN}")
    for u in range(6):
        O = 100 + 4*(u & 1)
        N = 64
        src = [ACC[2*u] + j for j in range(4)] + [ACC[2*u+1] + j for j in range(4)]
        for p in range(4):
            a(f"v_cvt_pk_bf16_f32 v{N+16+p}, v{src[2*p]}, v{src[2*p+1]}")
        for p in range(4):
            a(f"v_lshlrev_b32 v{N+2*p}, 16, v{N+16+p}")
            a(f"v_and_b32 v{N+2*p+1}, 0x{MASKHI:08x}, v{N+16+p}")
        for e in range(8):
            a(f"v_mul_f32 v{N+8+e}, v{N+e}, v{RCP}")
        for e in range(8):
            a(f"v_fma_f32 v{N+e}, -v{N+8+e}, v{DEN}, v{N+e}")
        for e in range(8):
            a(f"v_fma_f32 v{N+8+e}, v{N+e}, v{RCP}, v{N+8+e}")
        for p in range(4):
            a(f"v_cvt_pk_bf16_f32 v{O+p}, v{N+8+2*p}, v{N+8+2*p+1}")
        a(f"buffer_store_dwordx4 {vr(O,4)}, v{V_FRAG}, s[{SRD_Y}:{SRD_Y+3}], s{S_ROW} offen offset:{chk_buf_off(64*u)}{NTS}")
    a.dump_stamps(2)
    a.label("L_p2_end")
    a("s_endpgm")
    return name, a, 124

def descriptor(name, vgpr):
    acc = (vgpr + 3) // 4 * 4
    return f""".amdhsa_kernel {name}
  .amdhsa_next_free_vgpr {vgpr}
  .amdhsa_next_free_sgpr 64
  .amdhsa_accum_offset {acc}
  .amdhsa_group_segment_fixed_size 0
  .amdhsa_kernarg_size 56
  .amdhsa_user_sgpr_count 2
  .amdhsa_user_sgpr_kernarg_segment_ptr 1
  .amdhsa_system_sgpr_workgroup_id_x 1
.end_amdhsa_kernel
"""

HEADER = """; Kernarg layout for this problem (56 bytes, ptrs only, base s[0:1]):
"""

def main():
    ks = [kernel_phase1(), kernel_reduce(), kernel_phase2()]
    out = HEADER
    out += f"; @launch kernel=rfa_phase1_kernel grid=(256,1,1) block=(1024,1,1) lds={K1_LDS}\n"
    out += f"; @launch kernel=rfa_reduce_kernel grid=(416,1,1) block=(256,1,1) lds=0\n"
    out += f"; @launch kernel=standalone__linear_kernel_rfa__prompt_kernel grid=(256,1,1) block=(1024,1,1) lds={K3_LDS}\n"
    out += '.amdgcn_target "amdgcn-amd-amdhsa--gfx950"\n.text\n'
    for name, a, vg in ks:
        out += a.text()
    out += '.section .rodata,"a"\n.p2align 6\n'
    for name, a, vg in ks:
        out += descriptor(name, vg)
    path = sys.argv[1] if len(sys.argv) > 1 else "standalone__linear_kernel_rfa__prompt.s"
    open(path, "w").write(out)
    print("wrote", path, len(out), "bytes")

if __name__ == "__main__":
    main()
```

```python
import numpy as np, sys

def f32bits(x):
    return int(np.float32(x).view(np.uint32))

H, S, D, M = 32, 2048, 192, 64
ROWB = D * 2
TENS_BYTES = H * S * ROWB
OM_BYTES = M * ROWB
SCALE = f32bits(float(D) ** -0.25)
LOG2E = 1.4426950408889634
L_HI = np.float32(LOG2E)
L_LO = np.float32(LOG2E - float(L_HI))
LN2 = np.float32(0.6931471805599453)
EPS_B = 0x35860000
MASKHI = 0xffff0000

NCHUNK = 8
PART_TILES = 52
PART_BYTES = PART_TILES * 1024
PART_TOTAL = 256 * PART_BYTES
FRAG_BASE = 16 * 1024 * 1024
FRAG_HEAD = 26 * 1024
FRAG_END = FRAG_BASE + H * FRAG_HEAD

OMEGA_LDS = 0
K1_PHI_LDS = 24576
PHI_ROW = 2112
K1_V_LDS = K1_PHI_LDS + 16 * PHI_ROW
K1_LDS = K1_V_LDS + 256 * ROWB
K3_FRAG_LDS = 24576
K3_LDS = K3_FRAG_LDS + FRAG_HEAD
K3_FLAG = K3_LDS
K3F_LDS = K3_LDS + 64

import os
DIAG = int(os.environ.get("DIAG", "0"))
DIAG_BASE = 128 * 1024 * 1024
NT = " nt" if int(os.environ.get("NT", "1")) else ""
NTS = " nt" if int(os.environ.get("NTS", "1")) else ""
KFIRST = int(os.environ.get("KFIRST", "2"))
class Asm:
    def __init__(self):
        self.lines = []
        self.nstamp = 0
    def __call__(self, s):
        self.lines.append("    " + s)
    def raw(self, s):
        self.lines.append(s)
    def label(self, s):
        self.lines.append(s + ":")
    def comment(self, s):
        self.lines.append("    ; " + s)
    def text(self):
        return "\n".join(self.lines) + "\n"
    def stamp(self, what=""):
        if not DIAG:
            return
        i = self.nstamp; self.nstamp += 1
        assert i < 10
        self(f"s_memrealtime s[{70+2*i}:{71+2*i}]")
        self("s_waitcnt lgkmcnt(0)")
    def dump_stamps(self, kid):
        if not DIAG:
            return
        self("s_waitcnt vmcnt(0) lgkmcnt(0)")
        self.stamp("end")
        self("s_mov_b32 s24, s10")
        self("s_mov_b32 s25, s11")
        self(f"s_mov_b32 s26, {DIAG_BASE + 3*16*1024*1024}")
        self("s_mov_b32 s27, 0x00020000")
        for i in range(12):
            self(f"v_mov_b32 v{4+i}, s{70+2*i}" if i < self.nstamp else f"v_mov_b32 v{4+i}, 0")
        self("v_mov_b32 v3, 0")
        self("s_lshl_b32 s3, s2, 4")
        self("s_add_u32 s3, s3, s28")
        self("s_lshl_b32 s3, s3, 6")
        self(f"s_add_u32 s3, s3, {DIAG_BASE + kid*16*1024*1024}")
        self("s_mov_b64 exec, 1")
        for i in range(3):
            self(f"buffer_store_dwordx4 v[{4+4*i}:{7+4*i}], v3, s[24:27], s3 offen offset:{16*i}")

def vr(base, n):
    return f"v[{base}:{base+n-1}]"

def chk_buf_off(off):
    assert 0 <= off <= 4095, off
    return off

def chk_ds_off(off):
    assert 0 <= off <= 65535, off
    return off

def srd(a, dst, ptr, nbytes):
    a(f"s_mov_b32 s{dst}, s{ptr}")
    a(f"s_mov_b32 s{dst+1}, s{ptr+1}")
    a(f"s_mov_b32 s{dst+2}, {nbytes}")
    a(f"s_mov_b32 s{dst+3}, 0x00020000")

S_X = 4
S_Y = 6
S_OM = 8
S_WS = 10
SRD_X, SRD_Y, SRD_OM, SRD_WS = 12, 16, 20, 24
S_W, S_H, S_C, S_ROW = 28, 29, 30, 31
S_T0, S_T1, S_T2 = 32, 33, 41
S_SCALE, S_LHI, S_LLO, S_LN2 = 34, 35, 36, 37
S_MT2, S_DG, S_POFF = 38, 39, 40
S_FOFF = 42

V_TID, V_LANE, V_FRAG, V_L16 = 0, 1, 2, 11
V_B = 16
V_SQ = 40
V_SQB = 44
V_C0125, V_EPS = 45, 46
V_C = 48
V_RING = 64

def prologue_common(a, n_wg, xoff, yoff):
    a(f"s_cmp_ge_u32 s2, {n_wg}")
    a(f"s_cbranch_scc1 {a.end_label}")
    a.stamp("entry")
    a(f"s_load_dwordx2 s[{S_X}:{S_X+1}], s[0:1], {xoff}")
    a(f"s_load_dwordx2 s[{S_Y}:{S_Y+1}], s[0:1], {yoff}")
    a(f"s_load_dwordx2 s[{S_OM}:{S_OM+1}], s[0:1], 24")
    a(f"s_load_dwordx2 s[{S_WS}:{S_WS+1}], s[0:1], 48")
    a(f"v_and_b32 v{V_LANE}, 63, v{V_TID}")
    a(f"v_lshrrev_b32 v12, 6, v{V_TID}")
    a(f"v_and_b32 v13, 15, v{V_LANE}")
    a(f"v_readfirstlane_b32 s{S_W}, v12")
    a(f"v_lshrrev_b32 v14, 4, v{V_LANE}")
    a(f"v_mul_u32_u24 v{V_FRAG}, {ROWB}, v13")
    a(f"v_lshl_add_u32 v{V_FRAG}, v14, 4, v{V_FRAG}")
    a(f"v_lshlrev_b32 v{V_L16}, 4, v{V_LANE}")
    a(f"s_lshr_b32 s{S_H}, s2, 3")
    a(f"s_and_b32 s{S_C}, s2, 7")
    a(f"s_mov_b32 s{S_SCALE}, 0x{SCALE:08x}")
    a(f"s_mov_b32 s{S_LHI}, 0x{f32bits(L_HI):08x}")
    a(f"s_mov_b32 s{S_LLO}, 0x{f32bits(L_LO):08x}")
    a(f"s_mov_b32 s{S_LN2}, 0x{f32bits(LN2):08x}")
    a(f"v_mov_b32 v{V_C0125}, 0x3e000000")
    a(f"v_mov_b32 v{V_EPS}, 0x{EPS_B:08x}")
    a(f"s_lshl_b32 s{S_T0}, s{S_H}, 11")
    a(f"s_lshl_b32 s{S_T1}, s{S_C}, 8")
    a(f"s_add_u32 s{S_T0}, s{S_T0}, s{S_T1}")
    a(f"s_lshl_b32 s{S_T1}, s{S_W}, 4")
    a(f"s_add_u32 s{S_T0}, s{S_T0}, s{S_T1}")
    a(f"s_mul_i32 s{S_ROW}, s{S_T0}, {ROWB}")
    a("s_waitcnt lgkmcnt(0)")
    a.stamp("kernarg")
    srd(a, SRD_X, S_X, TENS_BYTES)
    srd(a, SRD_Y, S_Y, TENS_BYTES)
    srd(a, SRD_OM, S_OM, OM_BYTES)

def omega_dma(a, tag):
    for second in (0, 1):
        if second:
            a(f"s_cmp_ge_u32 s{S_W}, 8")
            a(f"s_cbranch_scc1 L_om_skip_{tag}")
            a(f"s_add_u32 s{S_T2}, s{S_W}, 16")
        else:
            a(f"s_mov_b32 s{S_T2}, s{S_W}")
        a(f"s_mul_i32 s{S_T0}, s{S_T2}, 43")
        a(f"s_lshr_b32 s{S_T0}, s{S_T0}, 8")
        a(f"s_mul_i32 s{S_T1}, s{S_T0}, 6")
        a(f"s_sub_u32 s{S_T1}, s{S_T2}, s{S_T1}")
        a(f"s_mul_i32 s{S_T0}, s{S_T0}, {16*ROWB}")
        a(f"s_lshl_b32 s{S_T1}, s{S_T1}, 6")
        a(f"s_add_u32 s{S_T0}, s{S_T0}, s{S_T1}")
        a(f"s_lshl_b32 s{S_T1}, s{S_T2}, 10")
        a(f"s_add_u32 s{S_T1}, s{S_T1}, {OMEGA_LDS}")
        a(f"s_mov_b32 m0, s{S_T1}")
        a("s_nop 0")
        a(f"buffer_load_dwordx4 v{V_FRAG}, s[{SRD_OM}:{SRD_OM+3}], s{S_T0} offen lds")
    a.label(f"L_om_skip_{tag}")

def load_x_frags(a, t0=0, t1=6):
    for t in range(t0, t1):
        a(f"buffer_load_dwordx4 {vr(V_B+4*t,4)}, v{V_FRAG}, s[{SRD_X}:{SRD_X+3}], s{S_ROW} offen offset:{chk_buf_off(64*t)}{NT}")

def transform(a, younger_vmem, tmp):
    for i in range(4):
        a(f"v_mov_b32 v{V_SQ+i}, 0")
    for t in range(6):
        a(f"s_waitcnt vmcnt({younger_vmem + 5 - t})")
        regs = [V_B + 4*t + i for i in range(4)]
        lo = [tmp + 2*i for i in range(4)]
        hi = [tmp + 2*i + 1 for i in range(4)]
        for i, r in enumerate(regs):
            a(f"v_lshlrev_b32 v{lo[i]}, 16, v{r}")
            a(f"v_and_b32 v{hi[i]}, 0x{MASKHI:08x}, v{r}")
        for i in range(4):
            a(f"v_mul_f32 v{lo[i]}, s{S_SCALE}, v{lo[i]}")
            a(f"v_mul_f32 v{hi[i]}, s{S_SCALE}, v{hi[i]}")
        for i, r in enumerate(regs):
            a(f"v_cvt_pk_bf16_f32 v{r}, v{lo[i]}, v{hi[i]}")
        for i, r in enumerate(regs):
            a(f"v_dot2_f32_bf16 v{V_SQ+i}, v{r}, v{r}, v{V_SQ+i}")
    a("s_nop 3")
    a(f"v_add_f32 v{V_SQ}, v{V_SQ}, v{V_SQ+1}")
    a(f"v_add_f32 v{V_SQ+2}, v{V_SQ+2}, v{V_SQ+3}")
    a(f"v_add_f32 v{V_SQ}, v{V_SQ}, v{V_SQ+2}")
    a(f"v_mov_b32 v{V_SQ+1}, v{V_SQ}")
    a("s_nop 1")
    a(f"v_permlane32_swap_b32 v{V_SQ}, v{V_SQ+1}")
    a(f"v_add_f32 v{V_SQ}, v{V_SQ}, v{V_SQ+1}")
    a(f"v_mov_b32 v{V_SQ+1}, v{V_SQ}")
    a("s_nop 1")
    a(f"v_permlane16_swap_b32 v{V_SQ}, v{V_SQ+1}")
    a(f"v_add_f32 v{V_SQ}, v{V_SQ}, v{V_SQ+1}")
    a(f"v_cvt_pk_bf16_f32 v{V_SQ+1}, v{V_SQ}, v{V_SQ}")
    a(f"v_lshlrev_b32 v{V_SQB}, 16, v{V_SQ+1}")

def gemm1(a, nring):
    nfr = 24
    def rd(f):
        a(f"ds_read_b128 {vr(V_RING+4*(f % nring),4)}, v{V_L16} offset:{chk_ds_off(OMEGA_LDS + 1024*f)}")
    for f in range(min(nring, nfr)):
        rd(f)
    for f in range(nfr):
        mt, t = divmod(f, 6)
        outstanding = min(nring, nfr - f) - 1
        a(f"s_waitcnt lgkmcnt({outstanding})")
        srcc = "0" if t == 0 else vr(V_C+4*mt, 4)
        a(f"v_mfma_f32_16x16x32_bf16 {vr(V_C+4*mt,4)}, {vr(V_RING+4*(f % nring),4)}, {vr(V_B+4*t,4)}, {srcc}")
        if f + nring < nfr:
            rd(f + nring)

def phi_tile(a, c, T, outp):
    P0, P1 = T, T + 1
    X = [T + 2 + i for i in range(4)]
    E = [T + 6 + i for i in range(4)]
    R = [T + 10 + i for i in range(4)]
    def unpack(dst):
        a(f"v_lshlrev_b32 v{dst[0]}, 16, v{P0}")
        a(f"v_and_b32 v{dst[1]}, 0x{MASKHI:08x}, v{P0}")
        a(f"v_lshlrev_b32 v{dst[2]}, 16, v{P1}")
        a(f"v_and_b32 v{dst[3]}, 0x{MASKHI:08x}, v{P1}")
    a(f"v_cvt_pk_bf16_f32 v{P0}, v{c}, v{c+1}")
    a(f"v_cvt_pk_bf16_f32 v{P1}, v{c+2}, v{c+3}")
    unpack(X)
    for i in range(4):
        a(f"v_fma_f32 v{X[i]}, v{V_SQB}, -0.5, v{X[i]}")
    a(f"v_cvt_pk_bf16_f32 v{P0}, v{X[0]}, v{X[1]}")
    a(f"v_cvt_pk_bf16_f32 v{P1}, v{X[2]}, v{X[3]}")
    unpack(X)
    for i in range(4):
        a(f"v_mul_f32 v{E[i]}, s{S_LHI}, v{X[i]}")
    for i in range(4):
        a(f"v_fma_f32 v{R[i]}, v{X[i]}, s{S_LHI}, -v{E[i]}")
    for i in range(4):
        a(f"v_fma_f32 v{R[i]}, v{X[i]}, s{S_LLO}, v{R[i]}")
    for i in range(4):
        a(f"v_exp_f32 v{E[i]}, v{E[i]}")
    for i in range(4):
        a(f"v_mul_f32 v{R[i]}, s{S_LN2}, v{R[i]}")
    for i in range(4):
        a(f"v_fma_f32 v{E[i]}, v{E[i]}, v{R[i]}, v{E[i]}")
    a(f"v_cvt_pk_bf16_f32 v{P0}, v{E[0]}, v{E[1]}")
    a(f"v_cvt_pk_bf16_f32 v{P1}, v{E[2]}, v{E[3]}")
    unpack(X)
    for i in range(4):
        a(f"v_fma_f32 v{X[i]}, v{X[i]}, v{V_C0125}, v{V_EPS}")
    a(f"v_cvt_pk_bf16_f32 v{outp}, v{X[0]}, v{X[1]}")
    a(f"v_cvt_pk_bf16_f32 v{outp+1}, v{X[2]}, v{X[3]}")

def kernel_phase1():
    a = Asm(); a.end_label = "L_p1_end"
    name = "rfa_phase1_kernel"
    a.raw(f".globl {name}\n.p2align 8\n.type {name},@function\n{name}:")
    prologue_common(a, 256, 8, 16)
    srd(a, SRD_WS, S_WS, PART_TOTAL)
    V_VD = 3
    V_PHIW, V_PHIR, V_VR = 6, 7, 8
    for i in range(3):
        a(f"v_add_u32 v12, {64*i}, v{V_LANE}")
        a("v_mul_u32_u24 v13, 171, v12")
        a("v_lshrrev_b32 v13, 12, v13")
        a("v_mul_u32_u24 v14, 24, v13")
        a("v_sub_u32 v14, v12, v14")
        a("v_lshrrev_b32 v15, 1, v13")
        a("v_and_b32 v15, 3, v15")
        a("v_lshlrev_b32 v15, 1, v15")
        a("v_xor_b32 v14, v14, v15")
        a(f"v_mul_u32_u24 v{V_VD+i}, {ROWB}, v13")
        a(f"v_lshl_add_u32 v{V_VD+i}, v14, 4, v{V_VD+i}")
    a(f"v_and_b32 v13, 15, v{V_LANE}")
    a(f"v_lshrrev_b32 v14, 4, v{V_LANE}")
    a(f"v_mul_u32_u24 v{V_PHIW}, {PHI_ROW}, v14")
    a(f"v_lshl_add_u32 v{V_PHIW}, v13, 3, v{V_PHIW}")
    a(f"s_lshl_b32 s{S_T0}, s{S_W}, 7")
    a(f"s_add_u32 s{S_T0}, s{S_T0}, {K1_PHI_LDS}")
    a(f"v_add_u32 v{V_PHIW}, s{S_T0}, v{V_PHIW}")
    a(f"s_lshr_b32 s{S_MT2}, s{S_W}, 2")
    a(f"s_and_b32 s{S_DG}, s{S_W}, 3")
    a(f"v_and_b32 v12, 3, v{V_LANE}")
    a(f"v_lshrrev_b32 v13, 2, v{V_LANE}")
    a(f"v_mul_u32_u24 v{V_PHIR}, {PHI_ROW}, v12")
    a(f"v_lshl_add_u32 v{V_PHIR}, v13, 3, v{V_PHIR}")
    a(f"s_mul_i32 s{S_T0}, s{S_MT2}, {4*PHI_ROW}")
    a(f"s_add_u32 s{S_T0}, s{S_T0}, {K1_PHI_LDS}")
    a(f"v_add_u32 v{V_PHIR}, s{S_T0}, v{V_PHIR}")
    a("v_lshrrev_b32 v14, 1, v13")
    a("v_and_b32 v14, 3, v14")
    a("v_lshlrev_b32 v14, 1, v14")
    a("v_lshrrev_b32 v15, 1, v12")
    a(f"s_mul_i32 s{S_T0}, s{S_DG}, 6")
    a(f"v_mul_u32_u24 v13, {ROWB}, v13")
    a("v_and_b32 v12, 1, v12")
    a("v_lshl_add_u32 v13, v12, 3, v13")
    a(f"v_add_u32 v13, {K1_V_LDS}, v13")
    for i in range(3):
        a(f"s_add_u32 s{S_T1}, s{S_T0}, {2*i}")
        a(f"v_add_u32 v12, s{S_T1}, v15")
        a("v_xor_b32 v12, v12, v14")
        a(f"v_lshl_add_u32 v{V_VR+i}, v12, 4, v13")
    a(f"s_mul_i32 s{S_T0}, s2, {PART_TILES}")
    a(f"s_mul_i32 s{S_T1}, s{S_MT2}, 13")
    a(f"s_add_u32 s{S_T0}, s{S_T0}, s{S_T1}")
    a(f"s_mul_i32 s{S_T1}, s{S_DG}, 3")
    a(f"s_add_u32 s{S_T0}, s{S_T0}, s{S_T1}")
    a(f"s_lshl_b32 s{S_POFF}, s{S_T0}, 10")

    omega_dma(a, "p1")
    load_x_frags(a, 0, KFIRST)
    a(f"s_waitcnt vmcnt({KFIRST})")
    a("s_barrier")
    load_x_frags(a, KFIRST, 6)
    a.stamp("loads issued")
    a.stamp("barrier1")
    TMP = 96
    transform(a, 0, TMP)
    a(f"s_mul_i32 s{S_T2}, s{S_W}, {16*ROWB}")
    a(f"s_add_u32 s{S_T2}, s{S_T2}, {K1_V_LDS}")
    for i in range(3):
        a(f"s_add_u32 s{S_T0}, s{S_T2}, {1024*i}")
        a(f"s_mov_b32 m0, s{S_T0}")
        a("s_nop 0")
        for grp in range(2):
            a(f"buffer_load_dwordx4 v{V_VD+i}, s[{SRD_Y}:{SRD_Y+3}], s{S_ROW} offen offset:{chk_buf_off(3072*grp)}{NT} lds")
    a.stamp("transform")
    gemm1(a, 4)
    a.stamp("gemm1")
    for mt in range(4):
        outp = 96 + 2*mt
        phi_tile(a, V_C + 4*mt, 80, outp)
        a(f"ds_write_b64 v{V_PHIW}, {vr(outp,2)} offset:{chk_ds_off(mt*4*PHI_ROW)}")
    a("s_waitcnt vmcnt(0) lgkmcnt(0)")
    a.stamp("phi+V landed")
    a("s_barrier")
    a.stamp("barrier2")
    V_A2 = 64
    V_ONE = 72
    V_B2 = 16
    V_ACC = 48
    for i in range(4):
        a(f"v_mov_b32 v{V_ONE+i}, 0x3f803f80")
    def reads(ks):
        b = ks & 1
        a(f"ds_read_b64_tr_b16 {vr(V_A2+4*b,2)}, v{V_PHIR} offset:{chk_ds_off(ks*256)}")
        a(f"ds_read_b64_tr_b16 {vr(V_A2+4*b+2,2)}, v{V_PHIR} offset:{chk_ds_off(ks*256+128)}")
        for i in range(3):
            base = V_B2 + 12*b + 4*i
            off = (ks % 4) * 32 * ROWB
            a(f"ds_read_b64_tr_b16 {vr(base,2)}, v{V_VR+i} offset:{chk_ds_off(off)}")
            a(f"ds_read_b64_tr_b16 {vr(base+2,2)}, v{V_VR+i} offset:{chk_ds_off(off+16*ROWB)}")
    reads(0)
    for ks in range(8):
        if ks + 1 < 8:
            if ks + 1 == 4:
                for i in range(3):
                    a(f"v_add_u32 v{V_VR+i}, {4*32*ROWB}, v{V_VR+i}")
            reads(ks + 1)
        a(f"s_waitcnt lgkmcnt({8 if ks + 1 < 8 else 0})")
        b = ks & 1
        for i in range(4):
            srcc = "0" if ks == 0 else vr(V_ACC+4*i, 4)
            bop = vr(V_B2+12*b+4*i, 4) if i < 3 else vr(V_ONE, 4)
            a(f"v_mfma_f32_16x16x32_bf16 {vr(V_ACC+4*i,4)}, {vr(V_A2+4*b,4)}, {bop}, {srcc}")
    a("s_nop 7")
    a("s_nop 1")
    a.stamp("gemm2")
    for i in range(3):
        a(f"buffer_store_dwordx4 {vr(V_ACC+4*i,4)}, v{V_L16}, s[{SRD_WS}:{SRD_WS+3}], s{S_POFF} offen offset:{chk_buf_off(1024*i)}")
    a(f"s_cmp_lg_u32 s{S_DG}, 0")
    a("s_cbranch_scc1 L_p1_noz")
    a(f"s_mul_i32 s{S_T0}, s2, {PART_TILES}")
    a(f"s_mul_i32 s{S_T1}, s{S_MT2}, 13")
    a(f"s_add_u32 s{S_T0}, s{S_T0}, s{S_T1}")
    a(f"s_add_u32 s{S_T0}, s{S_T0}, 12")
    a(f"s_lshl_b32 s{S_T0}, s{S_T0}, 10")
    a(f"buffer_store_dwordx4 {vr(V_ACC+12,4)}, v{V_L16}, s[{SRD_WS}:{SRD_WS+3}], s{S_T0} offen")
    a.label("L_p1_noz")
    a.dump_stamps(0)
    a.label("L_p1_end")
    a("s_endpgm")
    return name, a, 104

def kernel_reduce():
    a = Asm(); a.end_label = "L_red_end"
    name = "rfa_reduce_kernel"
    a.raw(f".globl {name}\n.p2align 8\n.type {name},@function\n{name}:")
    NWG = 416
    a(f"s_cmp_ge_u32 s2, {NWG}")
    a(f"s_cbranch_scc1 L_red_end")
    a.stamp("entry")
    a(f"s_load_dwordx2 s[{S_WS}:{S_WS+1}], s[0:1], 48")
    a(f"v_and_b32 v{V_LANE}, 63, v0")
    a("v_lshrrev_b32 v12, 6, v0")
    a(f"v_lshlrev_b32 v{V_L16}, 4, v{V_LANE}")
    a("v_readfirstlane_b32 s28, v12")
    a(f"v_and_b32 v13, 15, v{V_LANE}")
    a(f"v_lshrrev_b32 v14, 4, v{V_LANE}")
    a("v_lshrrev_b32 v15, 2, v13")
    a("v_and_b32 v15, 1, v15")
    a("v_lshlrev_b32 v2, 11, v15")
    a("v_lshrrev_b32 v15, 3, v13")
    a("v_lshl_add_u32 v2, v15, 6, v2")
    a("v_and_b32 v15, 3, v13")
    a("v_lshl_add_u32 v2, v15, 4, v2")
    a("v_lshl_add_u32 v2, v14, 8, v2")
    a("v_lshlrev_b32 v3, 8, v14")
    a("v_lshl_add_u32 v3, v13, 4, v3")
    a("s_lshl_b32 s29, s2, 2")
    a("s_add_u32 s29, s29, s28")
    a("s_mul_i32 s30, s29, 1261")
    a("s_lshr_b32 s30, s30, 16")
    a("s_mul_i32 s31, s30, 52")
    a("s_sub_u32 s31, s29, s31")
    a("s_mul_i32 s32, s31, 5")
    a("s_lshr_b32 s32, s32, 6")
    a("s_mul_i32 s33, s32, 13")
    a("s_sub_u32 s33, s31, s33")
    a("s_mul_i32 s34, s30, 416")
    a("s_add_u32 s34, s34, s31")
    a("s_lshl_b32 s34, s34, 10")
    a("s_waitcnt lgkmcnt(0)")
    a.stamp("kernarg")
    srd(a, SRD_WS, S_WS, FRAG_END)
    for c in range(NCHUNK):
        a(f"buffer_load_dwordx4 {vr(16+4*c,4)}, v{V_L16}, s[{SRD_WS}:{SRD_WS+3}], s34 offen")
        if c + 1 < NCHUNK:
            a(f"s_add_u32 s34, s34, {PART_BYTES}")
    a.stamp("loads issued")
    a("s_lshr_b32 s35, s32, 1")
    a("s_and_b32 s36, s32, 1")
    a("s_lshl_b32 s35, s35, 10")
    a("s_lshl_b32 s36, s36, 3")
    a("s_add_u32 s35, s35, s36")
    a(f"s_mul_i32 s36, s30, {FRAG_HEAD}")
    a(f"s_add_u32 s36, s36, {FRAG_BASE}")
    a("s_add_u32 s35, s35, s36")
    a("s_cmp_eq_u32 s33, 12")
    a("s_cbranch_scc1 L_red_z")
    a("s_lshr_b32 s36, s33, 1")
    a("s_lshl_b32 s36, s36, 12")
    a("s_and_b32 s37, s33, 1")
    a("s_lshl_b32 s37, s37, 7")
    a("s_add_u32 s35, s35, s36")
    a("s_add_u32 s35, s35, s37")
    a("s_branch L_red_go")
    a.label("L_red_z")
    a(f"s_add_u32 s35, s35, {12*2048}")
    a("v_mov_b32 v2, v3")
    a.label("L_red_go")
    for c in range(1, NCHUNK):
        a(f"s_waitcnt vmcnt({NCHUNK - 1 - c})")
        for j in range(4):
            a(f"v_add_f32 v{16+j}, v{16+j}, v{16+4*c+j}")
    a.stamp("summed")
    a("v_cvt_pk_bf16_f32 v4, v16, v17")
    a("v_cvt_pk_bf16_f32 v5, v18, v19")
    a(f"buffer_store_dwordx2 v[4:5], v2, s[{SRD_WS}:{SRD_WS+3}], s35 offen")
    a.dump_stamps(1)
    a.label("L_red_end")
    a("s_endpgm")
    return name, a, 48

def phase2_tail(a, V_PB):
    a.comment("---- num^T (16 d x 16 q tiles) = kv^T . phi_q^T ; tile 12 = den (all rows = z)")
    ACC = [16 + 4*i for i in range(6)] + [48 + 4*i for i in range(4)] + [112 + 4*i for i in range(3)]
    NR = 6
    nfr = 26
    def rd(f):
        a(f"ds_read_b128 {vr(V_RING+4*(f % NR),4)}, v{V_L16} offset:{chk_ds_off(K3_FRAG_LDS + 1024*f)}")
    order = [24, 25] + list(range(24))
    for i in range(NR):
        rd_f = order[i]
        a(f"ds_read_b128 {vr(V_RING+4*i,4)}, v{V_L16} offset:{chk_ds_off(K3_FRAG_LDS + 1024*rd_f)}")
    for i, f in enumerate(order):
        T, kap = divmod(f, 2)
        outstanding = min(NR, nfr - i) - 1
        a(f"s_waitcnt lgkmcnt({outstanding})")
        srcc = "0" if kap == 0 else vr(ACC[T], 4)
        a(f"v_mfma_f32_16x16x32_bf16 {vr(ACC[T],4)}, {vr(V_RING+4*(i % NR),4)}, {vr(V_PB+4*kap,4)}, {srcc}")
        if i + NR < nfr:
            a(f"ds_read_b128 {vr(V_RING+4*(i % NR),4)}, v{V_L16} offset:{chk_ds_off(K3_FRAG_LDS + 1024*order[i+NR])}")
    a("s_nop 7")
    a("s_nop 1")
    a.stamp("gemm2")
    DEN, RCP = 96, 97
    a(f"v_cvt_pk_bf16_f32 v{DEN}, v{ACC[12]}, v{ACC[12]}")
    a(f"v_lshlrev_b32 v{DEN}, 16, v{DEN}")
    a(f"v_add_f32 v{DEN}, v{V_EPS}, v{DEN}")
    a(f"v_cvt_pk_bf16_f32 v{DEN}, v{DEN}, v{DEN}")
    a(f"v_lshlrev_b32 v{DEN}, 16, v{DEN}")
    a(f"v_rcp_f32 v{RCP}, v{DEN}")
    for u in range(6):
        O = 100 + 4*(u & 1)
        N = 64
        src = [ACC[2*u] + j for j in range(4)] + [ACC[2*u+1] + j for j in range(4)]
        for p in range(4):
            a(f"v_cvt_pk_bf16_f32 v{N+16+p}, v{src[2*p]}, v{src[2*p+1]}")
        for p in range(4):
            a(f"v_lshlrev_b32 v{N+2*p}, 16, v{N+16+p}")
            a(f"v_and_b32 v{N+2*p+1}, 0x{MASKHI:08x}, v{N+16+p}")
        for e in range(8):
            a(f"v_mul_f32 v{N+8+e}, v{N+e}, v{RCP}")
        for e in range(8):
            a(f"v_fma_f32 v{N+e}, -v{N+8+e}, v{DEN}, v{N+e}")
        for e in range(8):
            a(f"v_fma_f32 v{N+8+e}, v{N+e}, v{RCP}, v{N+8+e}")
        for p in range(4):
            a(f"v_cvt_pk_bf16_f32 v{O+p}, v{N+8+2*p}, v{N+8+2*p+1}")
        a(f"buffer_store_dwordx4 {vr(O,4)}, v{V_FRAG}, s[{SRD_Y}:{SRD_Y+3}], s{S_ROW} offen offset:{chk_buf_off(64*u)}{NTS}")
    a.dump_stamps(2)
    a.label("L_p2_end")
    a("s_endpgm")

def kernel_phase2():
    a = Asm(); a.end_label = "L_p2_end"
    name = "standalone__linear_kernel_rfa__prompt_kernel"
    a.raw(f".globl {name}\n.p2align 8\n.type {name},@function\n{name}:")
    prologue_common(a, 256, 0, 32)
    srd(a, SRD_WS, S_WS, FRAG_END)
    omega_dma(a, "p2")
    a(f"s_mul_i32 s{S_FOFF}, s{S_H}, {FRAG_HEAD}")
    a(f"s_add_u32 s{S_FOFF}, s{S_FOFF}, {FRAG_BASE}")
    for second in (0, 1):
        if second:
            a(f"s_cmp_ge_u32 s{S_W}, 10")
            a("s_cbranch_scc1 L_fr_skip")
            a(f"s_add_u32 s{S_T2}, s{S_W}, 16")
        else:
            a(f"s_mov_b32 s{S_T2}, s{S_W}")
        a(f"s_lshl_b32 s{S_T0}, s{S_T2}, 10")
        a(f"s_add_u32 s{S_T1}, s{S_T0}, {K3_FRAG_LDS}")
        a(f"s_add_u32 s{S_T0}, s{S_T0}, s{S_FOFF}")
        a(f"s_mov_b32 m0, s{S_T1}")
        a("s_nop 0")
        a(f"buffer_load_dwordx4 v{V_L16}, s[{SRD_WS}:{SRD_WS+3}], s{S_T0} offen lds")
    a.label("L_fr_skip")
    load_x_frags(a, 0, KFIRST)
    a(f"s_waitcnt vmcnt({KFIRST})")
    a("s_barrier")
    load_x_frags(a, KFIRST, 6)
    a.stamp("loads issued")
    a.stamp("barrier")
    transform(a, 0, 96)
    a.stamp("transform")
    gemm1(a, 6)
    a.stamp("gemm1")
    V_PB = 88
    for mt in range(4):
        phi_tile(a, V_C + 4*mt, 96, V_PB + 2*mt)
    a.stamp("phi")
    phase2_tail(a, V_PB)
    return name, a, 124


SRD_DBG = 52
S_SPIN, S_POLL, S_I, S_PSRC, S_PDST = 56, 57, 58, 59, 60
def kernel_phase2_fused():
    a = Asm(); a.end_label = "L_p2_end"
    name = "standalone__linear_kernel_rfa__prompt_kernel"
    a.raw(f".globl {name}\n.p2align 8\n.type {name},@function\n{name}:")
    a(f"s_load_dwordx2 s[{SRD_DBG}:{SRD_DBG+1}], s[0:1], 40")
    prologue_common(a, 256, 0, 32)
    srd(a, SRD_WS, S_WS, FRAG_END)
    a(f"s_mov_b32 s{SRD_DBG+2}, 256")
    a(f"s_mov_b32 s{SRD_DBG+3}, 0x00020000")
    V_FA, V_FV, V_PL = 6, 7, 8
    a(f"v_mov_b32 v{V_FA}, {K3_FLAG}")
    a(f"v_mov_b32 v{V_FV}, 0")
    a(f"ds_write_b32 v{V_FA}, v{V_FV}")
    omega_dma(a, "p2")
    a(f"s_mul_i32 s{S_FOFF}, s{S_H}, {FRAG_HEAD}")
    a(f"s_add_u32 s{S_FOFF}, s{S_FOFF}, {FRAG_BASE}")
    a(f"s_cmp_lg_u32 s{S_W}, 15")
    a("s_cbranch_scc1 L_f_notw15a")
    load_x_frags(a)
    a.label("L_f_notw15a")
    a(f"s_lshl_b32 s{S_I}, s{S_W}, 3")
    a(f"s_add_u32 s{S_I}, s{S_I}, s{S_C}")
    a(f"s_cmp_ge_u32 s{S_I}, {PART_TILES}")
    a("s_cbranch_scc1 L_f_nored1")
    a(f"s_mul_i32 s{S_PSRC}, s{S_H}, {NCHUNK*PART_TILES}")
    a(f"s_add_u32 s{S_PSRC}, s{S_PSRC}, s{S_I}")
    a(f"s_lshl_b32 s{S_PSRC}, s{S_PSRC}, 10")
    RL = 48
    for c in range(NCHUNK):
        a(f"buffer_load_dwordx4 {vr(RL+4*c,4)}, v{V_L16}, s[{SRD_WS}:{SRD_WS+3}], s{S_PSRC} offen")
        if c + 1 < NCHUNK:
            a(f"s_add_u32 s{S_PSRC}, s{S_PSRC}, {PART_BYTES}")
    a.label("L_f_nored1")
    a("s_waitcnt lgkmcnt(0)")
    a("s_barrier")
    a.stamp("barrierA")
    a(f"s_cmp_ge_u32 s{S_I}, {PART_TILES}")
    a("s_cbranch_scc1 L_f_nored2")
    a(f"s_mul_i32 s{S_T0}, s{S_I}, 5")
    a(f"s_lshr_b32 s{S_T0}, s{S_T0}, 6")
    a(f"s_mul_i32 s{S_T1}, s{S_T0}, 13")
    a(f"s_sub_u32 s{S_T1}, s{S_I}, s{S_T1}")
    a(f"s_lshr_b32 s{S_T2}, s{S_T0}, 1")
    a(f"s_lshl_b32 s{S_T2}, s{S_T2}, 10")
    a(f"s_and_b32 s{S_T0}, s{S_T0}, 1")
    a(f"s_lshl_b32 s{S_T0}, s{S_T0}, 3")
    a(f"s_add_u32 s{S_PDST}, s{S_FOFF}, s{S_T2}")
    a(f"s_add_u32 s{S_PDST}, s{S_PDST}, s{S_T0}")
    a(f"v_and_b32 v80, 15, v{V_LANE}")
    a(f"v_lshrrev_b32 v81, 4, v{V_LANE}")
    a(f"s_cmp_eq_u32 s{S_T1}, 12")
    a("s_cbranch_scc1 L_f_ztile")
    a("v_lshrrev_b32 v82, 2, v80")
    a("v_and_b32 v82, 1, v82")
    a("v_lshlrev_b32 v83, 11, v82")
    a("v_lshrrev_b32 v82, 3, v80")
    a("v_lshl_add_u32 v83, v82, 6, v83")
    a("v_and_b32 v82, 3, v80")
    a("v_lshl_add_u32 v83, v82, 4, v83")
    a("v_lshl_add_u32 v83, v81, 8, v83")
    a(f"s_lshr_b32 s{S_T2}, s{S_T1}, 1")
    a(f"s_lshl_b32 s{S_T2}, s{S_T2}, 12")
    a(f"s_and_b32 s{S_T1}, s{S_T1}, 1")
    a(f"s_lshl_b32 s{S_T1}, s{S_T1}, 7")
    a(f"s_add_u32 s{S_PDST}, s{S_PDST}, s{S_T2}")
    a(f"s_add_u32 s{S_PDST}, s{S_PDST}, s{S_T1}")
    a("s_branch L_f_zdone")
    a.label("L_f_ztile")
    a("v_lshlrev_b32 v83, 8, v81")
    a("v_lshl_add_u32 v83, v80, 4, v83")
    a(f"s_add_u32 s{S_PDST}, s{S_PDST}, {12*2048}")
    a.label("L_f_zdone")
    for c in range(1, NCHUNK):
        a(f"s_waitcnt vmcnt({NCHUNK - 1 - c})")
        for j in range(4):
            a(f"v_add_f32 v{RL+j}, v{RL+j}, v{RL+4*c+j}")
    a(f"v_cvt_pk_bf16_f32 v{RL+4}, v{RL}, v{RL+1}")
    a(f"v_cvt_pk_bf16_f32 v{RL+5}, v{RL+2}, v{RL+3}")
    a(f"buffer_store_dwordx2 v[{RL+4}:{RL+5}], v83, s[{SRD_WS}:{SRD_WS+3}], s{S_PDST} offen sc1")
    a.label("L_f_nored2")
    a(f"s_cmp_eq_u32 s{S_W}, 15")
    a("s_cbranch_scc1 L_f_w15b")
    load_x_frags(a)
    a.label("L_f_w15b")
    a.stamp("loads issued")
    a("s_waitcnt vmcnt(6)")
    a("s_barrier")
    a.stamp("barrierB")
    transform(a, 0, 96)
    a.stamp("transform")
    gemm1(a, 6)
    V_PB = 88
    for mt in range(4):
        phi_tile(a, V_C + 4*mt, 96, V_PB + 2*mt)
    a.stamp("phi")
    a(f"s_cmp_lg_u32 s{S_W}, 15")
    a("s_cbranch_scc1 L_f_consumer")
    a(f"s_lshl_b32 s{S_T0}, s{S_H}, 2")
    a(f"v_mov_b32 v{V_FV}, s{S_T0}")
    a(f"v_mov_b32 v{V_PL}, 1")
    a("s_mov_b64 exec, 1")
    a("s_nop 1")
    a(f"buffer_atomic_add v{V_PL}, v{V_FV}, s[{SRD_DBG}:{SRD_DBG+3}], 0 offen sc1")
    a("s_mov_b64 exec, -1")
    a(f"s_mov_b32 s{S_SPIN}, 0x40000")
    a.label("L_f_poll")
    a(f"buffer_load_dword v{V_PL}, v{V_FV}, s[{SRD_DBG}:{SRD_DBG+3}], 0 offen sc1")
    a("s_waitcnt vmcnt(0)")
    a(f"v_readfirstlane_b32 s{S_POLL}, v{V_PL}")
    a("s_nop 3")
    a(f"s_cmp_ge_u32 s{S_POLL}, {NCHUNK}")
    a("s_cbranch_scc1 L_f_polled")
    a(f"s_sub_u32 s{S_SPIN}, s{S_SPIN}, 1")
    a(f"s_cmp_lg_u32 s{S_SPIN}, 0")
    a("s_cbranch_scc1 L_f_poll")
    a.label("L_f_polled")
    for g0 in range(0, 26, 4):
        a(f"s_add_u32 s{S_T0}, s{S_FOFF}, {1024*g0}")
        a(f"s_mov_b32 m0, {K3_FRAG_LDS + 1024*g0}")
        a("s_nop 0")
        for f in range(g0, min(g0 + 4, 26)):
            a(f"buffer_load_dwordx4 v{V_L16}, s[{SRD_WS}:{SRD_WS+3}], s{S_T0} offen offset:{chk_buf_off(1024*(f-g0))} sc1 lds")
    a("s_waitcnt vmcnt(0)")
    a(f"v_mov_b32 v{V_FV}, 1")
    a(f"ds_write_b32 v{V_FA}, v{V_FV}")
    a("s_waitcnt lgkmcnt(0)")
    a("s_branch L_f_go")
    a.label("L_f_consumer")
    a(f"s_mov_b32 s{S_SPIN}, 0x100000")
    a.label("L_f_spin")
    a(f"ds_read_b32 v{V_FV}, v{V_FA}")
    a("s_waitcnt lgkmcnt(0)")
    a(f"v_readfirstlane_b32 s{S_POLL}, v{V_FV}")
    a("s_nop 3")
    a(f"s_cmp_lg_u32 s{S_POLL}, 0")
    a("s_cbranch_scc1 L_f_go")
    a(f"s_sub_u32 s{S_SPIN}, s{S_SPIN}, 1")
    a(f"s_cmp_lg_u32 s{S_SPIN}, 0")
    a("s_cbranch_scc1 L_f_spin")
    a.label("L_f_go")
    a.stamp("kvT ready")
    phase2_tail(a, V_PB)
    return name, a, 124

def descriptor(name, vgpr):
    acc = (vgpr + 3) // 4 * 4
    NSGPR = 96 if DIAG else 64
    return f""".amdhsa_kernel {name}
  .amdhsa_next_free_vgpr {vgpr}
  .amdhsa_next_free_sgpr {NSGPR}
  .amdhsa_accum_offset {acc}
  .amdhsa_group_segment_fixed_size 0
  .amdhsa_kernarg_size 56
  .amdhsa_user_sgpr_count 2
  .amdhsa_user_sgpr_kernarg_segment_ptr 1
  .amdhsa_system_sgpr_workgroup_id_x 1
.end_amdhsa_kernel
"""

HEADER = """; Kernarg layout for this problem (56 bytes, ptrs only, base s[0:1]):
"""

def main():
    FUSED = int(os.environ.get("FUSED", "1"))
    ks = [kernel_phase1(), kernel_phase2_fused()] if FUSED else [kernel_phase1(), kernel_reduce(), kernel_phase2()]
    out = HEADER
    out += f"; @launch kernel=rfa_phase1_kernel grid=(256,1,1) block=(1024,1,1) lds={K1_LDS}\n"
    if FUSED:
        out += f"; @launch kernel=standalone__linear_kernel_rfa__prompt_kernel grid=(256,1,1) block=(1024,1,1) lds={K3F_LDS}\n"
    else:
        out += f"; @launch kernel=rfa_reduce_kernel grid=(416,1,1) block=(256,1,1) lds=0\n"
        out += f"; @launch kernel=standalone__linear_kernel_rfa__prompt_kernel grid=(256,1,1) block=(1024,1,1) lds={K3_LDS}\n"
    out += '.amdgcn_target "amdgcn-amd-amdhsa--gfx950"\n.text\n'
    for name, a, vg in ks:
        out += a.text()
    out += '.section .rodata,"a"\n.p2align 6\n'
    for name, a, vg in ks:
        out += descriptor(name, vg)
    path = sys.argv[1] if len(sys.argv) > 1 else "standalone__linear_kernel_rfa__prompt.s"
    open(path, "w").write(out)
    print("wrote", path, len(out), "bytes")

if __name__ == "__main__":
    main()
```

```python
import numpy as np, sys

def f32bits(x):
    return int(np.float32(x).view(np.uint32))

H, S, D, M = 32, 2048, 192, 64
ROWB = D * 2
TENS_BYTES = H * S * ROWB
OM_BYTES = M * ROWB
SCALE = f32bits(float(D) ** -0.25)
LOG2E = 1.4426950408889634
L_HI = np.float32(LOG2E)
L_LO = np.float32(LOG2E - float(L_HI))
LN2 = np.float32(0.6931471805599453)
EPS_B = 0x35860000
MASKHI = 0xffff0000

NCHUNK = 8
PART_TILES = 52
PART_BYTES = PART_TILES * 1024
PART_TOTAL = 256 * PART_BYTES
FRAG_BASE = 16 * 1024 * 1024
FRAG_HEAD = 26 * 1024
FRAG_END = FRAG_BASE + H * FRAG_HEAD
CNT_BASE = FRAG_BASE + 1024 * 1024
CNT_STRIDE = 256
WS_END = CNT_BASE + H * CNT_STRIDE

OMEGA_LDS = 0
K1_PHI_LDS = 24576
PHI_ROW = 2112
K1_V_LDS = K1_PHI_LDS + 16 * PHI_ROW
K1_LDS = K1_V_LDS + 256 * ROWB
K3_FRAG_LDS = 24576
K3_LDS = K3_FRAG_LDS + FRAG_HEAD
K3_FLAG = K3_LDS
K3F_LDS = K3_LDS + 64

import os
DIAG = int(os.environ.get("DIAG", "0"))
DIAG_BASE = 128 * 1024 * 1024
NT = " nt" if int(os.environ.get("NT", "1")) else ""
NTS = " nt" if int(os.environ.get("NTS", "1")) else ""
SC1P = " sc1" if int(os.environ.get("SC1P", "0")) else ""
KFIRST = int(os.environ.get("KFIRST", "2"))
class Asm:
    def __init__(self):
        self.lines = []
        self.nstamp = 0
    def __call__(self, s):
        self.lines.append("    " + s)
    def raw(self, s):
        self.lines.append(s)
    def label(self, s):
        self.lines.append(s + ":")
    def comment(self, s):
        self.lines.append("    ; " + s)
    def text(self):
        return "\n".join(self.lines) + "\n"
    def stamp(self, what=""):
        if not DIAG:
            return
        i = self.nstamp; self.nstamp += 1
        assert i < 10
        self(f"s_memrealtime s[{70+2*i}:{71+2*i}]")
        self("s_waitcnt lgkmcnt(0)")
    def dump_stamps(self, kid):
        if not DIAG:
            return
        self("s_waitcnt vmcnt(0) lgkmcnt(0)")
        self.stamp("end")
        self("s_mov_b32 s24, s10")
        self("s_mov_b32 s25, s11")
        self(f"s_mov_b32 s26, {DIAG_BASE + 3*16*1024*1024}")
        self("s_mov_b32 s27, 0x00020000")
        for i in range(12):
            self(f"v_mov_b32 v{4+i}, s{70+2*i}" if i < self.nstamp else f"v_mov_b32 v{4+i}, 0")
        self("v_mov_b32 v3, 0")
        self("s_lshl_b32 s3, s2, 4")
        self("s_add_u32 s3, s3, s28")
        self("s_lshl_b32 s3, s3, 6")
        self(f"s_add_u32 s3, s3, {DIAG_BASE + kid*16*1024*1024}")
        self("s_mov_b64 exec, 1")
        for i in range(3):
            self(f"buffer_store_dwordx4 v[{4+4*i}:{7+4*i}], v3, s[24:27], s3 offen offset:{16*i}")

def vr(base, n):
    return f"v[{base}:{base+n-1}]"

def chk_buf_off(off):
    assert 0 <= off <= 4095, off
    return off

def chk_ds_off(off):
    assert 0 <= off <= 65535, off
    return off

def srd(a, dst, ptr, nbytes):
    a(f"s_mov_b32 s{dst}, s{ptr}")
    a(f"s_mov_b32 s{dst+1}, s{ptr+1}")
    a(f"s_mov_b32 s{dst+2}, {nbytes}")
    a(f"s_mov_b32 s{dst+3}, 0x00020000")

S_X = 4
S_Y = 6
S_OM = 8
S_WS = 10
SRD_X, SRD_Y, SRD_OM, SRD_WS = 12, 16, 20, 24
S_W, S_H, S_C, S_ROW = 28, 29, 30, 31
S_T0, S_T1, S_T2 = 32, 33, 41
S_SCALE, S_LHI, S_LLO, S_LN2 = 34, 35, 36, 37
S_MT2, S_DG, S_POFF = 38, 39, 40
S_FOFF = 42

V_TID, V_LANE, V_FRAG, V_L16 = 0, 1, 2, 11
V_B = 16
V_SQ = 40
V_SQB = 44
V_C0125, V_EPS = 45, 46
V_C = 48
V_RING = 64

def prologue_common(a, n_wg, xoff, yoff):
    a(f"s_cmp_ge_u32 s2, {n_wg}")
    a(f"s_cbranch_scc1 {a.end_label}")
    a.stamp("entry")
    a(f"s_load_dwordx2 s[{S_X}:{S_X+1}], s[0:1], {xoff}")
    a(f"s_load_dwordx2 s[{S_Y}:{S_Y+1}], s[0:1], {yoff}")
    a(f"s_load_dwordx2 s[{S_OM}:{S_OM+1}], s[0:1], 24")
    a(f"s_load_dwordx2 s[{S_WS}:{S_WS+1}], s[0:1], 48")
    a(f"v_and_b32 v{V_LANE}, 63, v{V_TID}")
    a(f"v_lshrrev_b32 v12, 6, v{V_TID}")
    a(f"v_and_b32 v13, 15, v{V_LANE}")
    a(f"v_readfirstlane_b32 s{S_W}, v12")
    a(f"v_lshrrev_b32 v14, 4, v{V_LANE}")
    a(f"v_mul_u32_u24 v{V_FRAG}, {ROWB}, v13")
    a(f"v_lshl_add_u32 v{V_FRAG}, v14, 4, v{V_FRAG}")
    a(f"v_lshlrev_b32 v{V_L16}, 4, v{V_LANE}")
    a(f"s_lshr_b32 s{S_H}, s2, 3")
    a(f"s_and_b32 s{S_C}, s2, 7")
    a(f"s_mov_b32 s{S_SCALE}, 0x{SCALE:08x}")
    a(f"s_mov_b32 s{S_LHI}, 0x{f32bits(L_HI):08x}")
    a(f"s_mov_b32 s{S_LLO}, 0x{f32bits(L_LO):08x}")
    a(f"s_mov_b32 s{S_LN2}, 0x{f32bits(LN2):08x}")
    a(f"v_mov_b32 v{V_C0125}, 0x3e000000")
    a(f"v_mov_b32 v{V_EPS}, 0x{EPS_B:08x}")
    a(f"s_lshl_b32 s{S_T0}, s{S_H}, 11")
    a(f"s_lshl_b32 s{S_T1}, s{S_C}, 8")
    a(f"s_add_u32 s{S_T0}, s{S_T0}, s{S_T1}")
    a(f"s_lshl_b32 s{S_T1}, s{S_W}, 4")
    a(f"s_add_u32 s{S_T0}, s{S_T0}, s{S_T1}")
    a(f"s_mul_i32 s{S_ROW}, s{S_T0}, {ROWB}")
    a("s_waitcnt lgkmcnt(0)")
    a.stamp("kernarg")
    srd(a, SRD_X, S_X, TENS_BYTES)
    srd(a, SRD_Y, S_Y, TENS_BYTES)
    srd(a, SRD_OM, S_OM, OM_BYTES)

def omega_dma(a, tag):
    for second in (0, 1):
        if second:
            a(f"s_cmp_ge_u32 s{S_W}, 8")
            a(f"s_cbranch_scc1 L_om_skip_{tag}")
            a(f"s_add_u32 s{S_T2}, s{S_W}, 16")
        else:
            a(f"s_mov_b32 s{S_T2}, s{S_W}")
        a(f"s_mul_i32 s{S_T0}, s{S_T2}, 43")
        a(f"s_lshr_b32 s{S_T0}, s{S_T0}, 8")
        a(f"s_mul_i32 s{S_T1}, s{S_T0}, 6")
        a(f"s_sub_u32 s{S_T1}, s{S_T2}, s{S_T1}")
        a(f"s_mul_i32 s{S_T0}, s{S_T0}, {16*ROWB}")
        a(f"s_lshl_b32 s{S_T1}, s{S_T1}, 6")
        a(f"s_add_u32 s{S_T0}, s{S_T0}, s{S_T1}")
        a(f"s_lshl_b32 s{S_T1}, s{S_T2}, 10")
        a(f"s_add_u32 s{S_T1}, s{S_T1}, {OMEGA_LDS}")
        a(f"s_mov_b32 m0, s{S_T1}")
        a("s_nop 0")
        a(f"buffer_load_dwordx4 v{V_FRAG}, s[{SRD_OM}:{SRD_OM+3}], s{S_T0} offen lds")
    a.label(f"L_om_skip_{tag}")

def load_x_frags(a, t0=0, t1=6):
    for t in range(t0, t1):
        a(f"buffer_load_dwordx4 {vr(V_B+4*t,4)}, v{V_FRAG}, s[{SRD_X}:{SRD_X+3}], s{S_ROW} offen offset:{chk_buf_off(64*t)}{NT}")

def transform(a, younger_vmem, tmp):
    for i in range(4):
        a(f"v_mov_b32 v{V_SQ+i}, 0")
    for t in range(6):
        a(f"s_waitcnt vmcnt({younger_vmem + 5 - t})")
        regs = [V_B + 4*t + i for i in range(4)]
        lo = [tmp + 2*i for i in range(4)]
        hi = [tmp + 2*i + 1 for i in range(4)]
        for i, r in enumerate(regs):
            a(f"v_lshlrev_b32 v{lo[i]}, 16, v{r}")
            a(f"v_and_b32 v{hi[i]}, 0x{MASKHI:08x}, v{r}")
        for i in range(4):
            a(f"v_mul_f32 v{lo[i]}, s{S_SCALE}, v{lo[i]}")
            a(f"v_mul_f32 v{hi[i]}, s{S_SCALE}, v{hi[i]}")
        for i, r in enumerate(regs):
            a(f"v_cvt_pk_bf16_f32 v{r}, v{lo[i]}, v{hi[i]}")
        for i, r in enumerate(regs):
            a(f"v_dot2_f32_bf16 v{V_SQ+i}, v{r}, v{r}, v{V_SQ+i}")
    a("s_nop 3")
    a(f"v_add_f32 v{V_SQ}, v{V_SQ}, v{V_SQ+1}")
    a(f"v_add_f32 v{V_SQ+2}, v{V_SQ+2}, v{V_SQ+3}")
    a(f"v_add_f32 v{V_SQ}, v{V_SQ}, v{V_SQ+2}")
    a(f"v_mov_b32 v{V_SQ+1}, v{V_SQ}")
    a("s_nop 1")
    a(f"v_permlane32_swap_b32 v{V_SQ}, v{V_SQ+1}")
    a(f"v_add_f32 v{V_SQ}, v{V_SQ}, v{V_SQ+1}")
    a(f"v_mov_b32 v{V_SQ+1}, v{V_SQ}")
    a("s_nop 1")
    a(f"v_permlane16_swap_b32 v{V_SQ}, v{V_SQ+1}")
    a(f"v_add_f32 v{V_SQ}, v{V_SQ}, v{V_SQ+1}")
    a(f"v_cvt_pk_bf16_f32 v{V_SQ+1}, v{V_SQ}, v{V_SQ}")
    a(f"v_lshlrev_b32 v{V_SQB}, 16, v{V_SQ+1}")

def gemm1(a, nring):
    nfr = 24
    def rd(f):
        a(f"ds_read_b128 {vr(V_RING+4*(f % nring),4)}, v{V_L16} offset:{chk_ds_off(OMEGA_LDS + 1024*f)}")
    for f in range(min(nring, nfr)):
        rd(f)
    for f in range(nfr):
        mt, t = divmod(f, 6)
        outstanding = min(nring, nfr - f) - 1
        a(f"s_waitcnt lgkmcnt({outstanding})")
        srcc = "0" if t == 0 else vr(V_C+4*mt, 4)
        a(f"v_mfma_f32_16x16x32_bf16 {vr(V_C+4*mt,4)}, {vr(V_RING+4*(f % nring),4)}, {vr(V_B+4*t,4)}, {srcc}")
        if f + nring < nfr:
            rd(f + nring)

def phi_tile(a, c, T, outp):
    P0, P1 = T, T + 1
    X = [T + 2 + i for i in range(4)]
    E = [T + 6 + i for i in range(4)]
    R = [T + 10 + i for i in range(4)]
    def unpack(dst):
        a(f"v_lshlrev_b32 v{dst[0]}, 16, v{P0}")
        a(f"v_and_b32 v{dst[1]}, 0x{MASKHI:08x}, v{P0}")
        a(f"v_lshlrev_b32 v{dst[2]}, 16, v{P1}")
        a(f"v_and_b32 v{dst[3]}, 0x{MASKHI:08x}, v{P1}")
    a(f"v_cvt_pk_bf16_f32 v{P0}, v{c}, v{c+1}")
    a(f"v_cvt_pk_bf16_f32 v{P1}, v{c+2}, v{c+3}")
    unpack(X)
    for i in range(4):
        a(f"v_fma_f32 v{X[i]}, v{V_SQB}, -0.5, v{X[i]}")
    a(f"v_cvt_pk_bf16_f32 v{P0}, v{X[0]}, v{X[1]}")
    a(f"v_cvt_pk_bf16_f32 v{P1}, v{X[2]}, v{X[3]}")
    unpack(X)
    for i in range(4):
        a(f"v_mul_f32 v{E[i]}, s{S_LHI}, v{X[i]}")
    for i in range(4):
        a(f"v_fma_f32 v{R[i]}, v{X[i]}, s{S_LHI}, -v{E[i]}")
    for i in range(4):
        a(f"v_fma_f32 v{R[i]}, v{X[i]}, s{S_LLO}, v{R[i]}")
    for i in range(4):
        a(f"v_exp_f32 v{E[i]}, v{E[i]}")
    for i in range(4):
        a(f"v_mul_f32 v{R[i]}, s{S_LN2}, v{R[i]}")
    for i in range(4):
        a(f"v_fma_f32 v{E[i]}, v{E[i]}, v{R[i]}, v{E[i]}")
    a(f"v_cvt_pk_bf16_f32 v{P0}, v{E[0]}, v{E[1]}")
    a(f"v_cvt_pk_bf16_f32 v{P1}, v{E[2]}, v{E[3]}")
    unpack(X)
    for i in range(4):
        a(f"v_fma_f32 v{X[i]}, v{X[i]}, v{V_C0125}, v{V_EPS}")
    a(f"v_cvt_pk_bf16_f32 v{outp}, v{X[0]}, v{X[1]}")
    a(f"v_cvt_pk_bf16_f32 v{outp+1}, v{X[2]}, v{X[3]}")

def kernel_phase1():
    a = Asm(); a.end_label = "L_p1_end"
    name = "rfa_phase1_kernel"
    a.raw(f".globl {name}\n.p2align 8\n.type {name},@function\n{name}:")
    prologue_common(a, 256, 8, 16)
    srd(a, SRD_WS, S_WS, WS_END)
    V_VD = 3
    V_PHIW, V_PHIR, V_VR = 6, 7, 8
    for i in range(3):
        a(f"v_add_u32 v12, {64*i}, v{V_LANE}")
        a("v_mul_u32_u24 v13, 171, v12")
        a("v_lshrrev_b32 v13, 12, v13")
        a("v_mul_u32_u24 v14, 24, v13")
        a("v_sub_u32 v14, v12, v14")
        a("v_lshrrev_b32 v15, 1, v13")
        a("v_and_b32 v15, 3, v15")
        a("v_lshlrev_b32 v15, 1, v15")
        a("v_xor_b32 v14, v14, v15")
        a(f"v_mul_u32_u24 v{V_VD+i}, {ROWB}, v13")
        a(f"v_lshl_add_u32 v{V_VD+i}, v14, 4, v{V_VD+i}")
    a(f"v_and_b32 v13, 15, v{V_LANE}")
    a(f"v_lshrrev_b32 v14, 4, v{V_LANE}")
    a(f"v_mul_u32_u24 v{V_PHIW}, {PHI_ROW}, v14")
    a(f"v_lshl_add_u32 v{V_PHIW}, v13, 3, v{V_PHIW}")
    a(f"s_lshl_b32 s{S_T0}, s{S_W}, 7")
    a(f"s_add_u32 s{S_T0}, s{S_T0}, {K1_PHI_LDS}")
    a(f"v_add_u32 v{V_PHIW}, s{S_T0}, v{V_PHIW}")
    a(f"s_lshr_b32 s{S_MT2}, s{S_W}, 2")
    a(f"s_and_b32 s{S_DG}, s{S_W}, 3")
    a(f"v_and_b32 v12, 3, v{V_LANE}")
    a(f"v_lshrrev_b32 v13, 2, v{V_LANE}")
    a(f"v_mul_u32_u24 v{V_PHIR}, {PHI_ROW}, v12")
    a(f"v_lshl_add_u32 v{V_PHIR}, v13, 3, v{V_PHIR}")
    a(f"s_mul_i32 s{S_T0}, s{S_MT2}, {4*PHI_ROW}")
    a(f"s_add_u32 s{S_T0}, s{S_T0}, {K1_PHI_LDS}")
    a(f"v_add_u32 v{V_PHIR}, s{S_T0}, v{V_PHIR}")
    a("v_lshrrev_b32 v14, 1, v13")
    a("v_and_b32 v14, 3, v14")
    a("v_lshlrev_b32 v14, 1, v14")
    a("v_lshrrev_b32 v15, 1, v12")
    a(f"s_mul_i32 s{S_T0}, s{S_DG}, 6")
    a(f"v_mul_u32_u24 v13, {ROWB}, v13")
    a("v_and_b32 v12, 1, v12")
    a("v_lshl_add_u32 v13, v12, 3, v13")
    a(f"v_add_u32 v13, {K1_V_LDS}, v13")
    for i in range(3):
        a(f"s_add_u32 s{S_T1}, s{S_T0}, {2*i}")
        a(f"v_add_u32 v12, s{S_T1}, v15")
        a("v_xor_b32 v12, v12, v14")
        a(f"v_lshl_add_u32 v{V_VR+i}, v12, 4, v13")
    a(f"s_mul_i32 s{S_T0}, s2, {PART_TILES}")
    a(f"s_mul_i32 s{S_T1}, s{S_MT2}, 13")
    a(f"s_add_u32 s{S_T0}, s{S_T0}, s{S_T1}")
    a(f"s_mul_i32 s{S_T1}, s{S_DG}, 3")
    a(f"s_add_u32 s{S_T0}, s{S_T0}, s{S_T1}")
    a(f"s_lshl_b32 s{S_POFF}, s{S_T0}, 10")

    omega_dma(a, "p1")
    load_x_frags(a, 0, KFIRST)
    a(f"s_waitcnt vmcnt({KFIRST})")
    a("s_barrier")
    load_x_frags(a, KFIRST, 6)
    a.stamp("loads issued")
    a.stamp("barrier1")
    TMP = 96
    transform(a, 0, TMP)
    a(f"s_mul_i32 s{S_T2}, s{S_W}, {16*ROWB}")
    a(f"s_add_u32 s{S_T2}, s{S_T2}, {K1_V_LDS}")
    for i in range(3):
        a(f"s_add_u32 s{S_T0}, s{S_T2}, {1024*i}")
        a(f"s_mov_b32 m0, s{S_T0}")
        a("s_nop 0")
        for grp in range(2):
            a(f"buffer_load_dwordx4 v{V_VD+i}, s[{SRD_Y}:{SRD_Y+3}], s{S_ROW} offen offset:{chk_buf_off(3072*grp)}{NT} lds")
    a.stamp("transform")
    gemm1(a, 4)
    a.stamp("gemm1")
    for mt in range(4):
        outp = 96 + 2*mt
        phi_tile(a, V_C + 4*mt, 80, outp)
        a(f"ds_write_b64 v{V_PHIW}, {vr(outp,2)} offset:{chk_ds_off(mt*4*PHI_ROW)}")
    a("s_waitcnt vmcnt(0) lgkmcnt(0)")
    a.stamp("phi+V landed")
    a("s_barrier")
    a.stamp("barrier2")
    V_A2 = 64
    V_ONE = 72
    V_B2 = 16
    V_ACC = 48
    for i in range(4):
        a(f"v_mov_b32 v{V_ONE+i}, 0x3f803f80")
    def reads(ks):
        b = ks & 1
        a(f"ds_read_b64_tr_b16 {vr(V_A2+4*b,2)}, v{V_PHIR} offset:{chk_ds_off(ks*256)}")
        a(f"ds_read_b64_tr_b16 {vr(V_A2+4*b+2,2)}, v{V_PHIR} offset:{chk_ds_off(ks*256+128)}")
        for i in range(3):
            base = V_B2 + 12*b + 4*i
            off = (ks % 4) * 32 * ROWB
            a(f"ds_read_b64_tr_b16 {vr(base,2)}, v{V_VR+i} offset:{chk_ds_off(off)}")
            a(f"ds_read_b64_tr_b16 {vr(base+2,2)}, v{V_VR+i} offset:{chk_ds_off(off+16*ROWB)}")
    reads(0)
    for ks in range(8):
        if ks + 1 < 8:
            if ks + 1 == 4:
                for i in range(3):
                    a(f"v_add_u32 v{V_VR+i}, {4*32*ROWB}, v{V_VR+i}")
            reads(ks + 1)
        a(f"s_waitcnt lgkmcnt({8 if ks + 1 < 8 else 0})")
        b = ks & 1
        for i in range(4):
            srcc = "0" if ks == 0 else vr(V_ACC+4*i, 4)
            bop = vr(V_B2+12*b+4*i, 4) if i < 3 else vr(V_ONE, 4)
            a(f"v_mfma_f32_16x16x32_bf16 {vr(V_ACC+4*i,4)}, {vr(V_A2+4*b,4)}, {bop}, {srcc}")
    a("s_nop 7")
    a("s_nop 1")
    a.stamp("gemm2")
    for i in range(3):
        a(f"buffer_store_dwordx4 {vr(V_ACC+4*i,4)}, v{V_L16}, s[{SRD_WS}:{SRD_WS+3}], s{S_POFF} offen offset:{chk_buf_off(1024*i)}{SC1P}")
    a(f"s_cmp_lg_u32 s{S_DG}, 0")
    a("s_cbranch_scc1 L_p1_noz")
    a(f"s_mul_i32 s{S_T0}, s2, {PART_TILES}")
    a(f"s_mul_i32 s{S_T1}, s{S_MT2}, 13")
    a(f"s_add_u32 s{S_T0}, s{S_T0}, s{S_T1}")
    a(f"s_add_u32 s{S_T0}, s{S_T0}, 12")
    a(f"s_lshl_b32 s{S_T0}, s{S_T0}, 10")
    a(f"buffer_store_dwordx4 {vr(V_ACC+12,4)}, v{V_L16}, s[{SRD_WS}:{SRD_WS+3}], s{S_T0} offen{SC1P}")
    a.label("L_p1_noz")
    a(f"s_or_b32 s{S_T0}, s{S_C}, s{S_W}")
    a(f"s_cmp_lg_u32 s{S_T0}, 0")
    a("s_cbranch_scc1 L_p1_nocnt")
    a(f"s_lshl_b32 s{S_T0}, s{S_H}, 8")
    a(f"s_add_u32 s{S_T0}, s{S_T0}, {CNT_BASE}")
    a("v_mov_b32 v12, 0")
    a("v_mov_b32 v13, 0")
    a("s_mov_b64 exec, 1")
    a("s_nop 1")
    a(f"buffer_store_dword v12, v13, s[{SRD_WS}:{SRD_WS+3}], s{S_T0} offen")
    a("s_mov_b64 exec, -1")
    a.label("L_p1_nocnt")
    a.dump_stamps(0)
    a.label("L_p1_end")
    a("s_endpgm")
    return name, a, 104

def kernel_reduce():
    a = Asm(); a.end_label = "L_red_end"
    name = "rfa_reduce_kernel"
    a.raw(f".globl {name}\n.p2align 8\n.type {name},@function\n{name}:")
    NWG = 416
    a(f"s_cmp_ge_u32 s2, {NWG}")
    a(f"s_cbranch_scc1 L_red_end")
    a.stamp("entry")
    a(f"s_load_dwordx2 s[{S_WS}:{S_WS+1}], s[0:1], 48")
    a(f"v_and_b32 v{V_LANE}, 63, v0")
    a("v_lshrrev_b32 v12, 6, v0")
    a(f"v_lshlrev_b32 v{V_L16}, 4, v{V_LANE}")
    a("v_readfirstlane_b32 s28, v12")
    a(f"v_and_b32 v13, 15, v{V_LANE}")
    a(f"v_lshrrev_b32 v14, 4, v{V_LANE}")
    a("v_lshrrev_b32 v15, 2, v13")
    a("v_and_b32 v15, 1, v15")
    a("v_lshlrev_b32 v2, 11, v15")
    a("v_lshrrev_b32 v15, 3, v13")
    a("v_lshl_add_u32 v2, v15, 6, v2")
    a("v_and_b32 v15, 3, v13")
    a("v_lshl_add_u32 v2, v15, 4, v2")
    a("v_lshl_add_u32 v2, v14, 8, v2")
    a("v_lshlrev_b32 v3, 8, v14")
    a("v_lshl_add_u32 v3, v13, 4, v3")
    a("s_lshl_b32 s29, s2, 2")
    a("s_add_u32 s29, s29, s28")
    a("s_mul_i32 s30, s29, 1261")
    a("s_lshr_b32 s30, s30, 16")
    a("s_mul_i32 s31, s30, 52")
    a("s_sub_u32 s31, s29, s31")
    a("s_mul_i32 s32, s31, 5")
    a("s_lshr_b32 s32, s32, 6")
    a("s_mul_i32 s33, s32, 13")
    a("s_sub_u32 s33, s31, s33")
    a("s_mul_i32 s34, s30, 416")
    a("s_add_u32 s34, s34, s31")
    a("s_lshl_b32 s34, s34, 10")
    a("s_waitcnt lgkmcnt(0)")
    a.stamp("kernarg")
    srd(a, SRD_WS, S_WS, FRAG_END)
    for c in range(NCHUNK):
        a(f"buffer_load_dwordx4 {vr(16+4*c,4)}, v{V_L16}, s[{SRD_WS}:{SRD_WS+3}], s34 offen")
        if c + 1 < NCHUNK:
            a(f"s_add_u32 s34, s34, {PART_BYTES}")
    a.stamp("loads issued")
    a("s_lshr_b32 s35, s32, 1")
    a("s_and_b32 s36, s32, 1")
    a("s_lshl_b32 s35, s35, 10")
    a("s_lshl_b32 s36, s36, 3")
    a("s_add_u32 s35, s35, s36")
    a(f"s_mul_i32 s36, s30, {FRAG_HEAD}")
    a(f"s_add_u32 s36, s36, {FRAG_BASE}")
    a("s_add_u32 s35, s35, s36")
    a("s_cmp_eq_u32 s33, 12")
    a("s_cbranch_scc1 L_red_z")
    a("s_lshr_b32 s36, s33, 1")
    a("s_lshl_b32 s36, s36, 12")
    a("s_and_b32 s37, s33, 1")
    a("s_lshl_b32 s37, s37, 7")
    a("s_add_u32 s35, s35, s36")
    a("s_add_u32 s35, s35, s37")
    a("s_branch L_red_go")
    a.label("L_red_z")
    a(f"s_add_u32 s35, s35, {12*2048}")
    a("v_mov_b32 v2, v3")
    a.label("L_red_go")
    for c in range(1, NCHUNK):
        a(f"s_waitcnt vmcnt({NCHUNK - 1 - c})")
        for j in range(4):
            a(f"v_add_f32 v{16+j}, v{16+j}, v{16+4*c+j}")
    a.stamp("summed")
    a("v_cvt_pk_bf16_f32 v4, v16, v17")
    a("v_cvt_pk_bf16_f32 v5, v18, v19")
    a(f"buffer_store_dwordx2 v[4:5], v2, s[{SRD_WS}:{SRD_WS+3}], s35 offen")
    a.dump_stamps(1)
    a.label("L_red_end")
    a("s_endpgm")
    return name, a, 48

def phase2_tail(a, V_PB):
    a.comment("---- num^T (16 d x 16 q tiles) = kv^T . phi_q^T ; tile 12 = den (all rows = z)")
    ACC = [16 + 4*i for i in range(6)] + [48 + 4*i for i in range(4)] + [112 + 4*i for i in range(3)]
    NR = 6
    nfr = 26
    def rd(f):
        a(f"ds_read_b128 {vr(V_RING+4*(f % NR),4)}, v{V_L16} offset:{chk_ds_off(K3_FRAG_LDS + 1024*f)}")
    order = [24, 25] + list(range(24))
    for i in range(NR):
        rd_f = order[i]
        a(f"ds_read_b128 {vr(V_RING+4*i,4)}, v{V_L16} offset:{chk_ds_off(K3_FRAG_LDS + 1024*rd_f)}")
    for i, f in enumerate(order):
        T, kap = divmod(f, 2)
        outstanding = min(NR, nfr - i) - 1
        a(f"s_waitcnt lgkmcnt({outstanding})")
        srcc = "0" if kap == 0 else vr(ACC[T], 4)
        a(f"v_mfma_f32_16x16x32_bf16 {vr(ACC[T],4)}, {vr(V_RING+4*(i % NR),4)}, {vr(V_PB+4*kap,4)}, {srcc}")
        if i + NR < nfr:
            a(f"ds_read_b128 {vr(V_RING+4*(i % NR),4)}, v{V_L16} offset:{chk_ds_off(K3_FRAG_LDS + 1024*order[i+NR])}")
    a("s_nop 7")
    a("s_nop 1")
    a.stamp("gemm2")
    DEN, RCP = 96, 97
    a(f"v_cvt_pk_bf16_f32 v{DEN}, v{ACC[12]}, v{ACC[12]}")
    a(f"v_lshlrev_b32 v{DEN}, 16, v{DEN}")
    a(f"v_add_f32 v{DEN}, v{V_EPS}, v{DEN}")
    a(f"v_cvt_pk_bf16_f32 v{DEN}, v{DEN}, v{DEN}")
    a(f"v_lshlrev_b32 v{DEN}, 16, v{DEN}")
    a(f"v_rcp_f32 v{RCP}, v{DEN}")
    for u in range(6):
        O = 100 + 4*(u & 1)
        N = 64
        src = [ACC[2*u] + j for j in range(4)] + [ACC[2*u+1] + j for j in range(4)]
        for p in range(4):
            a(f"v_cvt_pk_bf16_f32 v{N+16+p}, v{src[2*p]}, v{src[2*p+1]}")
        for p in range(4):
            a(f"v_lshlrev_b32 v{N+2*p}, 16, v{N+16+p}")
            a(f"v_and_b32 v{N+2*p+1}, 0x{MASKHI:08x}, v{N+16+p}")
        for e in range(8):
            a(f"v_mul_f32 v{N+8+e}, v{N+e}, v{RCP}")
        for e in range(8):
            a(f"v_fma_f32 v{N+e}, -v{N+8+e}, v{DEN}, v{N+e}")
        for e in range(8):
            a(f"v_fma_f32 v{N+8+e}, v{N+e}, v{RCP}, v{N+8+e}")
        for p in range(4):
            a(f"v_cvt_pk_bf16_f32 v{O+p}, v{N+8+2*p}, v{N+8+2*p+1}")
        a(f"buffer_store_dwordx4 {vr(O,4)}, v{V_FRAG}, s[{SRD_Y}:{SRD_Y+3}], s{S_ROW} offen offset:{chk_buf_off(64*u)}{NTS}")
    a.dump_stamps(2)
    a.label("L_p2_end")
    a("s_endpgm")

def kernel_phase2():
    a = Asm(); a.end_label = "L_p2_end"
    name = "standalone__linear_kernel_rfa__prompt_kernel"
    a.raw(f".globl {name}\n.p2align 8\n.type {name},@function\n{name}:")
    prologue_common(a, 256, 0, 32)
    srd(a, SRD_WS, S_WS, FRAG_END)
    omega_dma(a, "p2")
    a(f"s_mul_i32 s{S_FOFF}, s{S_H}, {FRAG_HEAD}")
    a(f"s_add_u32 s{S_FOFF}, s{S_FOFF}, {FRAG_BASE}")
    for second in (0, 1):
        if second:
            a(f"s_cmp_ge_u32 s{S_W}, 10")
            a("s_cbranch_scc1 L_fr_skip")
            a(f"s_add_u32 s{S_T2}, s{S_W}, 16")
        else:
            a(f"s_mov_b32 s{S_T2}, s{S_W}")
        a(f"s_lshl_b32 s{S_T0}, s{S_T2}, 10")
        a(f"s_add_u32 s{S_T1}, s{S_T0}, {K3_FRAG_LDS}")
        a(f"s_add_u32 s{S_T0}, s{S_T0}, s{S_FOFF}")
        a(f"s_mov_b32 m0, s{S_T1}")
        a("s_nop 0")
        a(f"buffer_load_dwordx4 v{V_L16}, s[{SRD_WS}:{SRD_WS+3}], s{S_T0} offen lds")
    a.label("L_fr_skip")
    load_x_frags(a, 0, KFIRST)
    a(f"s_waitcnt vmcnt({KFIRST})")
    a("s_barrier")
    load_x_frags(a, KFIRST, 6)
    a.stamp("loads issued")
    a.stamp("barrier")
    transform(a, 0, 96)
    a.stamp("transform")
    gemm1(a, 6)
    a.stamp("gemm1")
    V_PB = 88
    for mt in range(4):
        phi_tile(a, V_C + 4*mt, 96, V_PB + 2*mt)
    a.stamp("phi")
    phase2_tail(a, V_PB)
    return name, a, 124


SRD_DBG = 52
S_SPIN, S_POLL, S_I, S_PSRC, S_PDST = 56, 57, 58, 59, 60
def kernel_phase2_fused():
    a = Asm(); a.end_label = "L_p2_end"
    name = "standalone__linear_kernel_rfa__prompt_kernel"
    NHELP, HELP0 = 4, 12
    a.raw(f".globl {name}\n.p2align 8\n.type {name},@function\n{name}:")
    prologue_common(a, 256, 0, 32)
    srd(a, SRD_WS, S_WS, WS_END)
    V_FA, V_FV, V_PL = 6, 7, 8
    V_Z4 = 100
    a(f"v_mov_b32 v{V_FA}, {K3_FLAG}")
    for i in range(4):
        a(f"v_mov_b32 v{V_Z4+i}, 0")
    a(f"ds_write_b128 v{V_FA}, {vr(V_Z4,4)}")
    a(f"ds_write_b32 v{V_FA}, v{V_Z4} offset:16")
    a(f"ds_write_b32 v{V_FA}, v{V_Z4} offset:20")
    omega_dma(a, "p2")
    a(f"s_mul_i32 s{S_FOFF}, s{S_H}, {FRAG_HEAD}")
    a(f"s_add_u32 s{S_FOFF}, s{S_FOFF}, {FRAG_BASE}")
    a(f"s_cmp_lt_u32 s{S_W}, {HELP0}")
    a("s_cbranch_scc1 L_f_nothelp1")
    load_x_frags(a)
    a("s_waitcnt vmcnt(6) lgkmcnt(0)")
    a("s_branch L_f_barA")
    a.label("L_f_nothelp1")
    a(f"s_lshl_b32 s{S_I}, s{S_W}, 3")
    a(f"s_add_u32 s{S_I}, s{S_I}, s{S_C}")
    a(f"s_cmp_ge_u32 s{S_I}, 26")
    a("s_cbranch_scc1 L_f_nored1")
    a(f"s_cmp_ge_u32 s{S_I}, 13")
    a(f"s_cselect_b32 s{S_T0}, 13, 0")
    a(f"s_sub_u32 s{S_T1}, s{S_I}, s{S_T0}")
    a(f"s_lshl_b32 s{S_T0}, s{S_T0}, 1")
    a(f"s_add_u32 s{S_T0}, s{S_T0}, s{S_T1}")
    a(f"s_mul_i32 s{S_PSRC}, s{S_H}, {NCHUNK*PART_TILES}")
    a(f"s_add_u32 s{S_PSRC}, s{S_PSRC}, s{S_T0}")
    a(f"s_lshl_b32 s{S_PSRC}, s{S_PSRC}, 10")
    a(f"s_add_u32 s61, s{S_PSRC}, {13*1024}")
    RL = 48
    RB = [16 + 4*c for c in range(6)] + [80, 84]
    for c in range(NCHUNK):
        a(f"buffer_load_dwordx4 {vr(RL+4*c,4)}, v{V_L16}, s[{SRD_WS}:{SRD_WS+3}], s{S_PSRC} offen")
        a(f"buffer_load_dwordx4 {vr(RB[c],4)}, v{V_L16}, s[{SRD_WS}:{SRD_WS+3}], s61 offen")
        if c + 1 < NCHUNK:
            a(f"s_add_u32 s{S_PSRC}, s{S_PSRC}, {PART_BYTES}")
            a(f"s_add_u32 s61, s61, {PART_BYTES}")
    a.label("L_f_nored1")
    a("s_waitcnt vmcnt(0) lgkmcnt(0)")
    a.label("L_f_barA")
    a("s_barrier")
    a.stamp("barrierA")
    a(f"s_cmp_ge_u32 s{S_W}, {HELP0}")
    a("s_cbranch_scc1 L_f_front")
    a(f"s_cmp_ge_u32 s{S_I}, 26")
    a("s_cbranch_scc1 L_f_nored2")
    a(f"s_cmp_ge_u32 s{S_I}, 13")
    a(f"s_cselect_b32 s{S_T0}, 13, 0")
    a(f"s_cselect_b32 s{S_T2}, 1024, 0")
    a(f"s_sub_u32 s{S_T1}, s{S_I}, s{S_T0}")
    a(f"s_add_u32 s{S_PDST}, s{S_FOFF}, s{S_T2}")
    a(f"v_and_b32 v96, 15, v{V_LANE}")
    a(f"v_lshrrev_b32 v97, 4, v{V_LANE}")
    a(f"s_cmp_eq_u32 s{S_T1}, 12")
    a("s_cbranch_scc1 L_f_ztile")
    a("v_lshrrev_b32 v98, 2, v96")
    a("v_and_b32 v98, 1, v98")
    a("v_lshlrev_b32 v99, 11, v98")
    a("v_lshrrev_b32 v98, 3, v96")
    a("v_lshl_add_u32 v99, v98, 6, v99")
    a("v_and_b32 v98, 3, v96")
    a("v_lshl_add_u32 v99, v98, 4, v99")
    a("v_lshl_add_u32 v99, v97, 8, v99")
    a(f"s_lshr_b32 s{S_T2}, s{S_T1}, 1")
    a(f"s_lshl_b32 s{S_T2}, s{S_T2}, 12")
    a(f"s_and_b32 s{S_T1}, s{S_T1}, 1")
    a(f"s_lshl_b32 s{S_T1}, s{S_T1}, 7")
    a(f"s_add_u32 s{S_PDST}, s{S_PDST}, s{S_T2}")
    a(f"s_add_u32 s{S_PDST}, s{S_PDST}, s{S_T1}")
    a("s_branch L_f_zdone")
    a.label("L_f_ztile")
    a("v_lshlrev_b32 v99, 8, v97")
    a("v_lshl_add_u32 v99, v96, 4, v99")
    a(f"s_add_u32 s{S_PDST}, s{S_PDST}, {12*2048}")
    a.label("L_f_zdone")
    for c in range(1, NCHUNK):
        for j in range(4):
            a(f"v_add_f32 v{RL+j}, v{RL+j}, v{RL+4*c+j}")
        for j in range(4):
            a(f"v_add_f32 v{RB[0]+j}, v{RB[0]+j}, v{RB[c]+j}")
    a(f"v_cvt_pk_bf16_f32 v{RL+4}, v{RL}, v{RL+1}")
    a(f"v_cvt_pk_bf16_f32 v{RL+5}, v{RL+2}, v{RL+3}")
    a(f"v_cvt_pk_bf16_f32 v{RL+6}, v{RB[0]}, v{RB[0]+1}")
    a(f"v_cvt_pk_bf16_f32 v{RL+7}, v{RB[0]+2}, v{RB[0]+3}")
    a(f"buffer_store_dwordx4 {vr(RL+4,4)}, v99, s[{SRD_WS}:{SRD_WS+3}], s{S_PDST} offen sc1")
    a(f"s_lshl_b32 s{S_T0}, s{S_H}, 8")
    a(f"s_add_u32 s{S_T0}, s{S_T0}, {CNT_BASE}")
    a(f"v_mov_b32 v{V_FV}, s{S_T0}")
    a(f"v_mov_b32 v{V_PL}, 1")
    a("s_waitcnt vmcnt(0)")
    a(f"v_mov_b32 v96, 1")
    a("s_mov_b64 exec, 1")
    a("s_nop 1")
    a(f"ds_add_rtn_u32 v97, v{V_FA}, v96 offset:16")
    a("s_waitcnt lgkmcnt(0)")
    a("s_mov_b64 exec, -1")
    a(f"v_readfirstlane_b32 s{S_T0}, v97")
    a(f"s_cmp_lt_u32 s{S_C}, 2")
    a(f"s_cselect_b32 s{S_T1}, 3, 2")
    a("s_nop 3")
    a(f"s_cmp_lg_u32 s{S_T0}, s{S_T1}")
    a("s_cbranch_scc1 L_f_nored2")
    a("s_mov_b64 exec, 1")
    a("s_nop 1")
    a(f"buffer_atomic_add v{V_PL}, v{V_FV}, s[{SRD_WS}:{SRD_WS+3}], 0 offen sc1")
    a("s_mov_b64 exec, -1")
    a.label("L_f_nored2")
    load_x_frags(a)
    a.label("L_f_front")
    a.stamp("loads issued")
    transform(a, 0, 96)
    a.stamp("transform")
    gemm1(a, 6)
    V_PB = 88
    for mt in range(4):
        phi_tile(a, V_C + 4*mt, 96, V_PB + 2*mt)
    a.stamp("phi")
    a(f"s_cmp_lt_u32 s{S_W}, {HELP0}")
    a("s_cbranch_scc1 L_f_consumer")
    a(f"s_cmp_lg_u32 s{S_W}, {HELP0}")
    a("s_cbranch_scc1 L_f_hwait")
    a(f"s_lshl_b32 s{S_T0}, s{S_H}, 8")
    a(f"s_add_u32 s{S_T0}, s{S_T0}, {CNT_BASE}")
    a(f"v_mov_b32 v{V_FV}, s{S_T0}")
    a(f"s_mov_b32 s{S_SPIN}, 0x40000")
    a.label("L_f_poll")
    a(f"buffer_load_dword v{V_PL}, v{V_FV}, s[{SRD_WS}:{SRD_WS+3}], 0 offen sc1")
    a("s_waitcnt vmcnt(0)")
    a(f"v_readfirstlane_b32 s{S_POLL}, v{V_PL}")
    a("s_nop 3")
    a(f"s_cmp_ge_u32 s{S_POLL}, {NCHUNK}")
    a("s_cbranch_scc1 L_f_pollok")
    a(f"s_sub_u32 s{S_SPIN}, s{S_SPIN}, 1")
    a(f"s_cmp_lg_u32 s{S_SPIN}, 0")
    a("s_cbranch_scc1 L_f_poll")
    a.label("L_f_pollok")
    a(f"v_mov_b32 v{V_PL}, 1")
    a(f"ds_write_b32 v{V_FA}, v{V_PL} offset:20")
    a("s_branch L_f_polled")
    a.label("L_f_hwait")
    a(f"s_mov_b32 s{S_SPIN}, 0x100000")
    a.label("L_f_hspin")
    a(f"ds_read_b32 v{V_PL}, v{V_FA} offset:20")
    a("s_waitcnt lgkmcnt(0)")
    a(f"v_readfirstlane_b32 s{S_POLL}, v{V_PL}")
    a("s_nop 3")
    a(f"s_cmp_lg_u32 s{S_POLL}, 0")
    a("s_cbranch_scc1 L_f_polled")
    a(f"s_sub_u32 s{S_SPIN}, s{S_SPIN}, 1")
    a(f"s_cmp_lg_u32 s{S_SPIN}, 0")
    a("s_cbranch_scc1 L_f_hspin")
    a.label("L_f_polled")
    a(f"s_sub_u32 s{S_T2}, s{S_W}, {HELP0}")
    a(f"s_mul_i32 s{S_T2}, s{S_T2}, 7168")
    a(f"s_add_u32 s{S_T0}, s{S_FOFF}, s{S_T2}")
    a(f"s_add_u32 s{S_T1}, s{S_T0}, 4096")
    a(f"v_add_u32 v{V_PL}, s{S_T2}, v{V_L16}")
    FR = 16
    for f in range(4):
        a(f"buffer_load_dwordx4 {vr(FR+4*f,4)}, v{V_L16}, s[{SRD_WS}:{SRD_WS+3}], s{S_T0} offen offset:{chk_buf_off(1024*f)} sc1")
    a(f"s_cmp_eq_u32 s{S_W}, {HELP0+3}")
    a("s_cbranch_scc1 L_f_last5")
    for f in range(3):
        a(f"buffer_load_dwordx4 {vr(FR+16+4*f,4)}, v{V_L16}, s[{SRD_WS}:{SRD_WS+3}], s{S_T1} offen offset:{chk_buf_off(1024*f)} sc1")
    a("s_waitcnt vmcnt(0)")
    for f in range(7):
        a(f"ds_write_b128 v{V_PL}, {vr(FR+4*f,4)} offset:{chk_ds_off(K3_FRAG_LDS + 1024*f)}")
    a("s_branch L_f_fetched")
    a.label("L_f_last5")
    a(f"buffer_load_dwordx4 {vr(FR+16,4)}, v{V_L16}, s[{SRD_WS}:{SRD_WS+3}], s{S_T1} offen sc1")
    a("s_waitcnt vmcnt(0)")
    for f in range(5):
        a(f"ds_write_b128 v{V_PL}, {vr(FR+4*f,4)} offset:{chk_ds_off(K3_FRAG_LDS + 1024*f)}")
    a.label("L_f_fetched")
    a("s_waitcnt lgkmcnt(0)")
    a(f"s_sub_u32 s{S_T2}, s{S_W}, {HELP0}")
    a(f"s_lshl_b32 s{S_T2}, s{S_T2}, 2")
    a(f"v_add_u32 v{V_FV}, s{S_T2}, v{V_FA}")
    a(f"v_mov_b32 v{V_PL}, 1")
    a(f"ds_write_b32 v{V_FV}, v{V_PL}")
    a("s_waitcnt lgkmcnt(0)")
    a.label("L_f_consumer")
    a(f"s_mov_b32 s{S_SPIN}, 0x100000")
    a.label("L_f_spin")
    a(f"ds_read_b128 {vr(V_Z4,4)}, v{V_FA}")
    a("s_waitcnt lgkmcnt(0)")
    a(f"v_and_b32 v{V_Z4}, v{V_Z4}, v{V_Z4+1}")
    a(f"v_and_b32 v{V_Z4+2}, v{V_Z4+2}, v{V_Z4+3}")
    a(f"v_and_b32 v{V_Z4}, v{V_Z4}, v{V_Z4+2}")
    a("s_nop 0")
    a(f"v_readfirstlane_b32 s{S_POLL}, v{V_Z4}")
    a("s_nop 3")
    a(f"s_cmp_lg_u32 s{S_POLL}, 0")
    a("s_cbranch_scc1 L_f_go")
    a(f"s_sub_u32 s{S_SPIN}, s{S_SPIN}, 1")
    a(f"s_cmp_lg_u32 s{S_SPIN}, 0")
    a("s_cbranch_scc1 L_f_spin")
    a.label("L_f_go")
    a.stamp("kvT ready")
    phase2_tail(a, V_PB)
    return name, a, 124

def descriptor(name, vgpr):
    acc = (vgpr + 3) // 4 * 4
    NSGPR = 96 if DIAG else 64
    return f""".amdhsa_kernel {name}
  .amdhsa_next_free_vgpr {vgpr}
  .amdhsa_next_free_sgpr {NSGPR}
  .amdhsa_accum_offset {acc}
  .amdhsa_group_segment_fixed_size 0
  .amdhsa_kernarg_size 56
  .amdhsa_user_sgpr_count 2
  .amdhsa_user_sgpr_kernarg_segment_ptr 1
  .amdhsa_system_sgpr_workgroup_id_x 1
.end_amdhsa_kernel
"""

HEADER = """; Kernarg layout for this problem (56 bytes, ptrs only, base s[0:1]):
"""

def main():
    FUSED = int(os.environ.get("FUSED", "1"))
    ks = [kernel_phase1(), kernel_phase2_fused()] if FUSED else [kernel_phase1(), kernel_reduce(), kernel_phase2()]
    out = HEADER
    out += f"; @launch kernel=rfa_phase1_kernel grid=(256,1,1) block=(1024,1,1) lds={K1_LDS}\n"
    if FUSED:
        out += f"; @launch kernel=standalone__linear_kernel_rfa__prompt_kernel grid=(256,1,1) block=(1024,1,1) lds={K3F_LDS}\n"
    else:
        out += f"; @launch kernel=rfa_reduce_kernel grid=(416,1,1) block=(256,1,1) lds=0\n"
        out += f"; @launch kernel=standalone__linear_kernel_rfa__prompt_kernel grid=(256,1,1) block=(1024,1,1) lds={K3_LDS}\n"
    out += '.amdgcn_target "amdgcn-amd-amdhsa--gfx950"\n.text\n'
    for name, a, vg in ks:
        out += a.text()
    out += '.section .rodata,"a"\n.p2align 6\n'
    for name, a, vg in ks:
        out += descriptor(name, vg)
    path = sys.argv[1] if len(sys.argv) > 1 else "standalone__linear_kernel_rfa__prompt.s"
    open(path, "w").write(out)
    print("wrote", path, len(out), "bytes")

if __name__ == "__main__":
    main()
```
